```python
import torch

def _softmax(x, axis=-1):
    return torch.softmax(x, dim=axis)
def _gelu(x):
    return torch.nn.functional.gelu(x, approximate="tanh")
def _silu(x):
    return torch.nn.functional.silu(x)
def _sigmoid(x):
    return torch.sigmoid(x)
def _layernorm(x, axis=-1, eps=1e-5):
    m = x.mean(dim=axis, keepdim=True)
    v = x.var(dim=axis, keepdim=True, unbiased=False)
    return (x - m) / torch.sqrt(v + eps)
def _scatter_add(tgt, idx, src, axis=0):
    return tgt.clone().index_add_(axis, idx, src)
def _segment_sum(src, seg, n):
    out = torch.zeros((n,) + src.shape[1:], dtype=src.dtype)
    return out.index_add_(0, seg, src)
def _pad(x, pw):
    flat = tuple(v for pair in reversed(pw) for v in pair)
    return torch.nn.functional.pad(x, flat)

kernel_name = 'parallel_sum__sliding_local_dilated__mixer_s_mlp__prompt'

def setup_inputs():

    _w = (lambda a: (lambda t: t.to(torch.bfloat16) if t.is_floating_point() else t)(torch.as_tensor(a)))
    def _A_setup():
        B, S, D = 1, 2048, 576
        return {
            "x": _w((lambda *s: torch.randn(*s, dtype=torch.bfloat16) * 0.05)(B, S, D)),
            "wqkv": _w((lambda *s: torch.randn(*s, dtype=torch.bfloat16) * 0.1)(D, 3 * D)),
            "wo": _w((lambda *s: torch.randn(*s, dtype=torch.bfloat16) * 0.05)(D, D)),
        }
    _A_in = _A_setup()

    def _B_setup():
        B, S, D, F = 1, 2048, 576, 4608
        return {
            "x":  _w((lambda *s: torch.randn(*s, dtype=torch.bfloat16) * 0.05)(B, S, D)),
            "w1": _w((lambda *s: torch.randn(*s, dtype=torch.bfloat16) * 3.2)(D, D) * (D ** -0.5)),
            "w2": _w((lambda *s: torch.randn(*s, dtype=torch.bfloat16) * 3.2)(D, D) * (D ** -0.5)),
            "w3": _w((lambda *s: torch.randn(*s, dtype=torch.bfloat16) * 3.2)(D, F) * (D ** -0.5)),
            "w4": _w((lambda *s: torch.randn(*s, dtype=torch.bfloat16) * 3.2)(F, D) * (F ** -0.5)),
        }
    _B_in = _B_setup()

    return {
        "A_x": _A_in["x"],
        "A_wqkv": _A_in["wqkv"],
        "A_wo": _A_in["wo"],
        "B_x": _B_in["x"],
        "B_w1": _B_in["w1"],
        "B_w2": _B_in["w2"],
        "B_w3": _B_in["w3"],
        "B_w4": _B_in["w4"],
    }

def reference(A_x, A_wqkv, A_wo, B_x, B_w1, B_w2, B_w3, B_w4):
    def _A_ref(x, wqkv, wo):
        B, S, D = x.shape
        H = 32; Dh = D // H
        W, dil = 8, 2
        qkv = (lambda x, *d: x.permute(*d))((x @ wqkv).reshape(B, S, 3, H, Dh), 2, 0, 3, 1, 4)
        q, k, v = qkv[0], qkv[1], qkv[2]
        scale = Dh ** -0.5
        pos = torch.arange(S)
        off = torch.arange(W) * dil
        idx = pos[:, None] - off[None, :]
        mask = idx >= 0
        idx_c = torch.where(mask, idx, 0).reshape(-1)
        kg = k[:, :, idx_c, :].reshape(B, H, S, W, Dh)
        vg = v[:, :, idx_c, :].reshape(B, H, S, W, Dh)
        logits = torch.einsum("bhsd,bhswd->bhsw", q, kg) * scale
        logits = torch.where(mask[None, None, :, :], logits, -1e9)
        attn = _softmax(logits, axis=-1)
        o = torch.einsum("bhsw,bhswd->bhsd", attn, vg)
        return (lambda x, *d: x.permute(*d))(o, 0, 2, 1, 3).reshape(B, S, D) @ wo

    def _B_ref(x, w1, w2, w3, w4):
        B, S, D = x.shape
        h = _gelu(_layernorm(x, axis=-1) @ w1)
        c = D // 4
        g0 = _pad(h[:, :, 0*c:1*c], ((0, 0), (1, 0), (0, 0)))[:, :S, :]
        g1 = _pad(h[:, :, 1*c:2*c], ((0, 0), (0, 1), (0, 0)))[:, 1:, :]
        g2 = _pad(h[:, :, 2*c:3*c], ((0, 0), (2, 0), (0, 0)))[:, :S, :]
        g3 = _pad(h[:, :, 3*c:   ], ((0, 0), (0, 2), (0, 0)))[:, 2:, :]
        hs = torch.concatenate([g0, g1, g2, g3], axis=-1) @ w2
        x1 = x + hs
        h2 = _gelu(_layernorm(x1, axis=-1) @ w3) @ w4
        return x1 + h2

    x = A_x
    xn = _layernorm(x, axis=-1)
    return x + _A_ref(xn, A_wqkv, A_wo) + _B_ref(xn, B_w1, B_w2, B_w3, B_w4)
```

```python
import re

def v(i, n=1):
    return f"v{i}" if n == 1 else f"v[{i}:{i+n-1}]"
def a(i, n=1):
    return f"a{i}" if n == 1 else f"a[{i}:{i+n-1}]"
def s(i, n=1):
    return f"s{i}" if n == 1 else f"s[{i}:{i+n-1}]"
def r(i, n=1):
    if i >= 256:
        return a(i - 256, n)
    assert i + n <= 256
    return v(i, n)

_REG = re.compile(r"^(-|\|)?(abs\()?([vas])(\d+|\[(\d+):(\d+)\])\)?\|?$")

def regs_of(tok):
    tok = tok.strip()
    if tok == "vcc":
        return [("s", 106), ("s", 107)]
    if tok == "vcc_lo":
        return [("s", 106)]
    if tok == "vcc_hi":
        return [("s", 107)]
    if tok == "exec":
        return [("s", 126), ("s", 127)]
    if tok == "m0":
        return [("s", 124)]
    m = _REG.match(tok)
    if not m:
        return []
    k = m.group(3)
    if m.group(5) is not None:
        lo, hi = int(m.group(5)), int(m.group(6))
    else:
        lo = hi = int(m.group(4))
    return [(k, i) for i in range(lo, hi + 1)]

TRANS = ("v_exp_f32", "v_log_f32", "v_rcp_f32", "v_rsq_f32", "v_sqrt_f32", "v_sin_f32", "v_cos_f32")

class Ins:
    __slots__ = ("text", "op", "ops", "rd", "wr", "kind", "passes", "srcc", "srcab", "size", "tok", "lab")
    def __init__(self, text):
        self.text = text
        self.tok = None
        self.lab = None
        t = text.split(";")[0].strip()
        if t.endswith(":") or t.startswith(".") or not t:
            self.kind = "label" if t.endswith(":") else "dir"
            self.op = t; self.ops = []; self.rd = set(); self.wr = set(); self.size = 0
            self.passes = 0; self.srcc = set(); self.srcab = set()
            return
        sp = t.split(None, 1)
        op = sp[0]
        self.op = op
        rest = sp[1] if len(sp) > 1 else ""
        parts, cur, depth = [], "", 0
        for ch in rest:
            if ch in "[(":
                depth += 1
            if ch in "])":
                depth -= 1
            if ch == "," and depth == 0:
                parts.append(cur.strip()); cur = ""
            else:
                cur += ch
        if cur.strip():
            parts.append(cur.strip())
        mods = ""
        if parts:
            lp = parts[-1].split(None, 1)
            parts[-1] = lp[0]
            mods = lp[1] if len(lp) > 1 else ""
        self.ops = parts
        rd, wr = set(), set()
        self.passes = 0; self.srcc = set(); self.srcab = set()
        R = [regs_of(p) for p in parts]
        base = op.replace("_e32", "").replace("_e64", "").replace("_dpp", "").replace("_sdwa", "")
        if op.startswith("v_mfma"):
            self.kind = "mfma"
            self.passes = 8 if "32x32x16" in op else 4
            wr.update(R[0]); rd.update(R[1]); rd.update(R[2]); rd.update(R[3])
            self.srcab = set(R[1]) | set(R[2]); self.srcc = set(R[3])
            self.size = 8
        elif op.startswith("ds_"):
            self.kind = "ds"; self.size = 8
            if op.startswith("ds_read") or op.startswith("ds_bpermute") or op.startswith("ds_swizzle") or op.startswith("ds_permute"):
                wr.update(R[0])
                for x in R[1:]: rd.update(x)
            else:
                for x in R: rd.update(x)
        elif op.startswith("buffer_") or op.startswith("global_"):
            self.kind = "vmem"; self.size = 8
            islds = " lds" in (" " + mods)
            if "_load" in op and not islds:
                wr.update(R[0])
                for x in R[1:]: rd.update(x)
            elif "atomic" in op and "sc0" in mods:
                wr.update(R[0])
                for x in R: rd.update(x)
            else:
                for x in R: rd.update(x)
            if islds:
                rd.add(("s", 124))
        elif op.startswith("s_load") or op.startswith("s_memtime") or op.startswith("s_memrealtime"):
            self.kind = "smem"; self.size = 8
            wr.update(R[0])
            for x in R[1:]: rd.update(x)
        elif op.startswith("s_"):
            self.kind = "salu"; self.size = 4
            nodst = ("s_cmp", "s_waitcnt", "s_nop", "s_barrier", "s_branch", "s_cbranch", "s_endpgm", "s_sleep",
                     "s_setprio", "s_bitcmp")
            if not op.startswith(nodst):
                if R: wr.update(R[0])
                for x in R[1:]: rd.update(x)
                if "saveexec" in op:
                    wr.update(regs_of("exec")); rd.update(regs_of("exec"))
            else:
                for x in R: rd.update(x)
            if not op.startswith(("s_waitcnt", "s_nop", "s_barrier", "s_branch", "s_cbranch", "s_endpgm", "s_sleep",
                                  "s_setprio", "s_movk", "s_addk", "s_mulk", "s_cmpk", "s_getreg")):
                if any(is_literal(p) for p in parts): self.size = 8
        elif op.startswith("v_"):
            self.kind = "valu"
            if base.startswith("v_cmp"):
                wr.update(R[0])
                for x in R[1:]: rd.update(x)
                if base.startswith("v_cmpx"): wr.update(regs_of("exec"))
            elif base.startswith("v_permlane") and "swap" in base:
                wr.update(R[0]); wr.update(R[1]); rd.update(R[0]); rd.update(R[1])
            elif base in ("v_add_co_u32", "v_sub_co_u32", "v_addc_co_u32", "v_subb_co_u32", "v_mad_u64_u32"):
                wr.update(R[0]); wr.update(R[1])
                for x in R[2:]: rd.update(x)
            else:
                wr.update(R[0])
                for x in R[1:]: rd.update(x)
                if base in ("v_fmac_f32", "v_dot2c_f32_bf16", "v_pk_fmac_f16", "v_writelane_b32") or "_dpp" in op or "_sdwa" in op:
                    rd.update(R[0])
            self.size = valu_size(op, base, parts, mods)
        else:
            raise ValueError("unknown op " + text)
        self.rd, self.wr = rd, wr

_INL = {"0.5", "-0.5", "1.0", "-1.0", "2.0", "-2.0", "4.0", "-4.0"}
def is_literal(p):
    p = p.strip()
    if regs_of(p) or p in _INL or p in ("off", "scc"):
        return False
    try:
        x = int(p, 0)
    except ValueError:
        try:
            float(p); return True
        except ValueError:
            return True
    if -16 <= x <= 64: return False
    if x in (0x3f000000, 0xbf000000, 0x3f800000, 0xbf800000, 0x40000000, 0xc0000000, 0x40800000, 0xc0800000, 0x3e22f983):
        return False
    if x >= 0xfffffff0: return False
    return True

VOP3_ONLY = ("v_fma_f32", "v_mul_lo_u32", "v_mul_hi_u32", "v_mad_u32_u24", "v_mad_i32_i24", "v_add3_u32", "v_lshl_add_u32",
             "v_add_lshl_u32", "v_and_or_b32", "v_bfe_u32", "v_bfe_i32", "v_bfi_b32", "v_cvt_pk_bf16_f32", "v_max3_f32",
             "v_min3_f32", "v_med3_f32", "v_max3_u32", "v_perm_b32", "v_dot2_f32_bf16", "v_lshl_or_b32", "v_or3_b32",
             "v_readlane_b32", "v_writelane_b32", "v_accvgpr_read_b32", "v_accvgpr_write_b32", "v_mbcnt_lo_u32_b32",
             "v_mbcnt_hi_u32_b32", "v_alignbit_b32", "v_bitop3_b32", "v_xad_u32", "v_mad_u64_u32", "v_min3_u32",
             "v_lshlrev_b64", "v_lshl_add_u64", "v_ldexp_f32")
def valu_size(op, base, parts, mods):
    if op.endswith("_e64") or "_dpp" in op or "_sdwa" in op or base.startswith("v_pk_") or base in VOP3_ONLY:
        return 8
    if base in ("v_fmaak_f32", "v_fmamk_f32"):
        return 8
    if any(is_literal(p) for p in parts[1:]):
        return 8
    if base.startswith("v_cmp"):
        if parts[0] != "vcc": return 8
        if not parts[2].startswith("v"): return 8
        return 4
    if base == "v_cndmask_b32":
        if parts[3] != "vcc" or not parts[2].startswith("v"): return 8
        return 4
    if any(p.startswith("-v") or p.startswith("|") or p.startswith("abs") or p.startswith("-s") for p in parts[1:]):
        return 8
    if mods:
        return 8
    if len(parts) == 3 and not (parts[2].startswith("v") and parts[2] not in ("vcc",)):
        return 8
    return 4


class Tok:
    __slots__ = ("cls", "seq")
    def __init__(self, cls):
        self.cls = cls; self.seq = None


class Wait:
    def __init__(self, toks):
        self.toks = [t for t in toks if t is not None]


class Stream:
    def __init__(self):
        self.items = []
    def __call__(self, text):
        last = None
        for line in text.split("\n"):
            line = line.strip()
            if not line or line.startswith(";"): continue
            i = Ins(line)
            if i.kind == "vmem": i.tok = Tok("vm")
            elif i.kind == "ds": i.tok = Tok("lgkm")
            elif i.kind == "smem": i.tok = Tok("smem")
            self.items.append(i)
            last = i
        return last.tok if last is not None else None
    def wait(self, *toks):
        flat = []
        for t in toks:
            if isinstance(t, (list, tuple)): flat.extend(t)
            else: flat.append(t)
        self.items.append(Wait(flat))
    def extend(self, other):
        self.items.extend(other.items if isinstance(other, Stream) else other)
    def __len__(self):
        return len(self.items)


def cost(it):
    if isinstance(it, Wait): return 4
    if it.kind in ("label", "dir"): return 0
    if it.kind == "mfma": return 8
    if it.kind == "valu" and it.op.replace("_e32", "").replace("_e64", "") in TRANS: return 8
    return 4


def interleave(main, fill, start=0, end=None):
    mi = [k for k, it in enumerate(main.items) if isinstance(it, Ins) and it.kind == "mfma"]
    if end is None: end = len(mi)
    sel = mi[start:end]
    total = sum(cost(x) for x in fill.items)
    out = Stream()
    fi = 0; acc = 0.0; done = 0
    selset = {k: n for n, k in enumerate(sel)}
    for k, it in enumerate(main.items):
        out.items.append(it)
        if k in selset:
            n = selset[k]
            target = total * (n + 1) / len(sel)
            while fi < len(fill.items) and (done + cost(fill.items[fi]) / 2 <= target or n == len(sel) - 1):
                out.items.append(fill.items[fi]); done += cost(fill.items[fi]); fi += 1
    assert fi == len(fill.items)
    return out


def resolve_waits(items):
    out = []
    n = {"vm": 0, "lgkm": 0}
    done = {"vm": 0, "lgkm": 0}
    smem_pending = False
    for it in items:
        if isinstance(it, Wait):
            need = {}
            for t in it.toks:
                assert t.seq is not None, "wait on op not yet issued"
                if t.cls == "smem":
                    if smem_pending: need["lgkm"] = n["lgkm"]; need["smem"] = True
                else:
                    if t.seq > done[t.cls]:
                        need[t.cls] = max(need.get(t.cls, 0), t.seq)
            parts = []
            if "vm" in need:
                c = n["vm"] - need["vm"]
                if c > 63: c = 63; need["vm"] = n["vm"] - 63
                parts.append(f"vmcnt({c})"); done["vm"] = need["vm"]
            if "lgkm" in need:
                if smem_pending:
                    c = 0; need["lgkm"] = n["lgkm"]; smem_pending = False
                else:
                    c = n["lgkm"] - need["lgkm"]
                    if c > 15: c = 15; need["lgkm"] = n["lgkm"] - 15
                parts.append(f"lgkmcnt({c})"); done["lgkm"] = need["lgkm"]
            if parts:
                out.append(Ins("s_waitcnt " + " ".join(parts)))
            continue
        if it.tok is not None:
            if it.tok.cls == "smem":
                smem_pending = True; it.tok.seq = 0
            else:
                n[it.tok.cls] += 1; it.tok.seq = n[it.tok.cls]
        if it.op == "s_waitcnt":
            m = re.search(r"vmcnt\((\d+)\)", it.text)
            if m: done["vm"] = max(done["vm"], n["vm"] - int(m.group(1)))
            m = re.search(r"lgkmcnt\((\d+)\)", it.text)
            if m:
                c = int(m.group(1))
                if c == 0: smem_pending = False
                if not smem_pending: done["lgkm"] = max(done["lgkm"], n["lgkm"] - c)
        out.append(it)
    return out


def states(it):
    if it.kind in ("label", "dir"): return 0
    if it.op == "s_nop": return int(it.ops[0], 0) + 1
    return 1


def need_states(p, c):
    w = 0
    pb = p.op.replace("_e32", "").replace("_e64", "")
    cb = c.op.replace("_e32", "").replace("_e64", "")
    vw = {x for x in p.wr if x[0] in "va"}
    sw = {x for x in p.wr if x[0] == "s"}
    if p.kind == "valu":
        if c.kind == "mfma" and vw & c.rd: w = max(w, 2)
        if c.kind == "mfma" and pb.startswith("v_pk_"): w = max(w, 2)
        if c.kind == "valu":
            if pb in TRANS and vw & (c.rd | c.wr) : w = max(w, 1)
            if cb.startswith("v_permlane") and vw & c.rd: w = max(w, 2)
            if "_dpp" in c.op and vw & c.rd: w = max(w, 2)
            if cb in ("v_readlane_b32", "v_readfirstlane_b32") and vw & c.rd: w = max(w, 1)
            if sw & c.rd: w = max(w, 4 if cb in ("v_readlane_b32", "v_writelane_b32") else 2)
            if ("_sdwa" in p.op or "op_sel" in p.text and not pb.startswith("v_pk_")) and vw & (c.rd | c.wr): w = max(w, 1)
            if pb.startswith("v_dot2") and vw & (c.rd | c.wr):
                same = (pb == cb)
                if same:
                    srcab = set()
                    for o in c.ops[1:3]: srcab |= set(regs_of(o))
                    if vw & srcab: w = max(w, 3)
                else:
                    w = max(w, 3)
            if ("s", 126) in sw:
                if "_dpp" in c.op: w = max(w, 5)
                if cb.startswith("v_permlane") or cb in ("v_readlane_b32", "v_readfirstlane_b32", "v_writelane_b32"): w = max(w, 4)
        if pb.startswith("v_dot2") and c.kind in ("ds", "vmem", "mfma") and vw & (c.rd | c.wr): w = max(w, 3)
        if c.kind == "vmem" and sw & c.rd: w = max(w, 5)
        if c.kind == "mfma" and ("s", 126) in sw: w = max(w, 4)
        if c.kind == "salu" and sw & c.rd: w = max(w, 1)
    if p.kind == "salu":
        if ("s", 124) in sw and c.kind == "vmem" and ("s", 124) in c.rd: w = max(w, 1)
    if p.kind == "mfma":
        big = {4: 8, 8: 12}[p.passes]
        if c.kind == "mfma":
            if vw & c.srcab: w = max(w, big)
            if vw & c.srcc:
                if not (vw == c.srcc and c.passes == p.passes): w = max(w, big - 2)
            elif vw & c.wr: w = max(w, big - 2)
        elif c.kind in ("valu", "ds", "vmem"):
            if vw & (c.rd | c.wr): w = max(w, big)
            if c.kind == "valu" and p.srcc & c.wr: w = max(w, {4: 3, 8: 7}[p.passes])
    if p.kind == "vmem" and "store" in p.op and ("x4" in p.op or "x3" in p.op):
        data = set(regs_of(p.ops[0] if p.op.startswith("buffer") else p.ops[1]))
        if data & c.wr: w = max(w, 2)
    return w


def pad_hazards(items, report=None):
    out = []
    for c in items:
        if c.kind in ("label", "dir"):
            out.append(c); continue
        dist = 0; need = 0
        k = len(out) - 1
        while k >= 0 and dist < 13:
            p = out[k]
            if p.kind not in ("label", "dir"):
                w = need_states(p, c)
                if w > dist: need = max(need, w - dist)
                dist += states(p)
            k -= 1
        if need:
            if report is not None: report.append((c.text, need))
            out.append(Ins(f"s_nop {need-1}"))
        out.append(c)
    return out


def check_inflight(items):
    probs = []
    pend = []
    n = {"vm": 0, "lgkm": 0}
    for it in items:
        if it.kind in ("label", "dir"): continue
        if it.op == "s_waitcnt":
            m = re.search(r"vmcnt\((\d+)\)", it.text)
            if m:
                d = n["vm"] - int(m.group(1)); pend = [p for p in pend if not (p[0] == "vm" and p[1] <= d)]
            m = re.search(r"lgkmcnt\((\d+)\)", it.text)
            if m:
                c = int(m.group(1)); d = n["lgkm"] - c
                pend = [p for p in pend if not ((p[0] == "lgkm" and p[1] <= d) or (p[0] == "smem" and c == 0))]
            continue
        touched = it.rd | it.wr
        for p in pend:
            if p[2] & touched:
                same = (it.kind == "vmem" and p[0] == "vm" or it.kind == "ds" and p[0] == "lgkm") and not (p[2] & it.rd)
                if not same:
                    probs.append((it.text, p[3]))
        if it.kind == "vmem" and it.tok is None:
            pass
        elif it.kind == "vmem":
            n["vm"] += 1
            if it.wr: pend.append(("vm", n["vm"], set(it.wr), it.text))
        elif it.kind == "ds":
            n["lgkm"] += 1
            if it.wr: pend.append(("lgkm", n["lgkm"], set(it.wr), it.text))
        elif it.kind == "smem":
            pend.append(("smem", 0, set(it.wr), it.text))
    return probs


def widen(it):
    if it.kind == "valu" and it.size == 4:
        base = it.op.replace("_e32", "")
        if base.startswith(("v_readfirstlane", "v_permlane", "v_dot2c", "v_accvgpr", "v_nop")): return None
        t = it.text.replace(it.op, base + "_e64", 1)
        n = Ins(t); n.tok = it.tok
        return n
    return None


def align_fix(items):
    out = list(items)
    pos = 0; k = 0; fixed = 0; left = 0
    cand = None
    while k < len(out):
        it = out[k]
        if it.kind == "dir" and it.op.startswith(".p2align"):
            al = 1 << int(it.op.split()[1].rstrip(","))
            pos = (pos + al - 1) // al * al; cand = None; k += 1; continue
        if it.size == 8 and pos % 32 == 28:
            if cand is not None:
                out[cand] = widen(out[cand]); pos += 4; fixed += 1
            else:
                left += 1
            cand = None
        if pos % 32 == 0: cand = None
        if it.size == 4 and widen(it) is not None and pos % 32 <= 24: cand = k
        newpos = pos + it.size
        if newpos // 32 != pos // 32 : cand = None
        pos = newpos
        k += 1
    return out, fixed, left, pos


def finalize(stream, align=True, verbose=True):
    items = resolve_waits(stream.items)
    rep = []
    items = pad_hazards(items, rep)
    probs = check_inflight(items)
    for p in probs[:20]: print("INFLIGHT PROBLEM:", p)
    assert not probs
    fixed = left = 0
    if align:
        items, fixed, left, size = align_fix(items)
    size = sum(i.size for i in items)
    if verbose:
        print(f"instrs {len(items)} bytes {size} hazard-nops {len(rep)} (states {sum(x[1] for x in rep)}) align fixed {fixed} left {left}")
    return "\n".join(("" if i.kind in ("label",) else "    ") + i.text for i in items), rep


def kd(name, vgpr=512, accum=256, sgpr=102):
    return f""".p2align 6
.amdhsa_kernel {name}
  .amdhsa_next_free_vgpr {vgpr}
  .amdhsa_next_free_sgpr {sgpr}
  .amdhsa_accum_offset {accum}
  .amdhsa_group_segment_fixed_size 0
  .amdhsa_kernarg_size 88
  .amdhsa_user_sgpr_count 2
  .amdhsa_user_sgpr_kernarg_segment_ptr 1
  .amdhsa_system_sgpr_workgroup_id_x 1
  .amdhsa_float_denorm_mode_32 3
.end_amdhsa_kernel
"""
```

```python
from asmlib import *
from layout import *

def srd(S, d, lo, nrec):
    S(f"s_mov_b32 s{d}, s{lo}\ns_and_b32 s{d+1}, s{lo+1}, 0xffff\ns_mov_b32 s{d+2}, {nrec}\ns_mov_b32 s{d+3}, 0x20000")

def gen_shuffle_kernel(name):
    S = Stream()
    S(f"{name}:")
    S(f"s_cmp_ge_u32 s2, 256\ns_cbranch_scc1 Lend_{name}")
    S("s_load_dwordx16 s[48:63], s[0:1], 0\ns_load_dwordx2 s[64:65], s[0:1], 80")
    S("v_and_b32 v1, 63, v0\nv_lshrrev_b32 v2, 6, v0")
    S("v_readfirstlane_b32 s4, v2")
    S("s_and_b32 s5, s2, 7\ns_lshr_b32 s6, s2, 3\ns_lshl_b32 s6, s6, 2\ns_add_u32 s6, s6, s4")
    S("v_lshrrev_b32 v3, 3, v1\nv_and_b32 v4, 7, v1\nv_lshlrev_b32 v4, 4, v4")
    S("v_lshrrev_b32 v5, 4, v1\nv_lshlrev_b32 v5, 10, v5\nv_bfe_u32 v6, v1, 2, 2\nv_lshl_add_u32 v5, v6, 7, v5")
    S("v_and_b32 v6, 3, v1\nv_lshl_add_u32 v5, v6, 3, v5\ns_mul_i32 s7, s4, 12288\nv_add_u32 v5, s7, v5")
    S("v_lshlrev_b32 v7, 4, v1")
    S("s_waitcnt lgkmcnt(0)")
    srd(S, 16, 64, WS_RECORDS)
    srd(S, 12, 60, 576*9216)
    S(f"v_lshlrev_b32 v8, 4, v0\nv_mov_b32 v9, {OOB}\nv_cmp_gt_u32 vcc, 32, v0\nv_cndmask_b32 v8, v9, v8, vcc")
    S("v_mov_b32 v12, 0\nv_mov_b32 v13, 0\nv_mov_b32 v14, 0\nv_mov_b32 v15, 0\ns_lshl_b32 s3, s2, 9")
    S("buffer_store_dwordx4 v[12:15], v8, s[16:19], s3 offen")
    for rnd in range(3):
        L = f"{name}_r{rnd}"
        DB, TS = 30 + 2*rnd, 31 + 2*rnd
        S(f"s_add_u32 s24, s6, {128*rnd}")
        S(f"s_cmp_ge_u32 s24, 324\ns_cbranch_scc1 LC_{L}")
        S(f"s_cmp_ge_u32 s24, 162\ns_cbranch_scc1 LB_{L}")
        S("s_mul_i32 s25, s24, 7282\ns_lshr_b32 s25, s25, 16\ns_mul_i32 s26, s25, 9\ns_sub_u32 s26, s24, s26")
        S("s_mov_b32 s12, s60\ns_and_b32 s13, s61, 0xffff\ns_mov_b32 s14, 5308416")
        S("s_mul_i32 s27, s25, 294912\ns_mul_i32 s28, s5, 1152\ns_add_u32 s27, s27, s28\ns_lshl_b32 s28, s26, 7\ns_add_u32 s27, s27, s28")
        S("s_mov_b32 s28, 73728")
        S("v_mul_u32_u24 v8, 9216, v3\nv_add_u32 v8, v8, v4")
        S("s_lshr_b32 s29, s26, 1\ns_mul_i32 s29, s29, 9\ns_and_b32 s3, s26, 1\ns_lshl_b32 s3, s3, 2\ns_add_u32 s29, s29, s3")
        S(f"s_cmp_eq_u32 s26, 8\ns_cselect_b32 s29, 8, s29\ns_cselect_b32 s{TS}, {162*1024}, {18*1024}".replace(f"s_cselect_b32 s{TS}, {162*1024}, {18*1024}", f"s_mov_b32 s{TS}, {18*1024}\ns_cselect_b32 s{TS}, {162*1024}, s{TS}"))
        S(f"s_mul_i32 s29, s29, 18\ns_add_u32 s29, s29, s25\ns_lshl_b32 s29, s29, 10\ns_mul_i32 s3, s5, 663552\ns_add_u32 s29, s29, s3\ns_add_u32 s{DB}, s29, {W3S}")
        S(f"s_branch LG_{L}")
        S(f"LB_{L}:")
        S("s_sub_u32 s24, s24, 162")
        S("s_mul_i32 s25, s24, 7282\ns_lshr_b32 s25, s25, 16\ns_mul_i32 s26, s25, 9\ns_sub_u32 s26, s24, s26")
        S("s_mov_b32 s12, s62\ns_and_b32 s13, s63, 0xffff\ns_mov_b32 s14, 5308416")
        S("s_mul_i32 s27, s25, 36864\ns_mul_i32 s28, s5, 663552\ns_add_u32 s27, s27, s28\ns_lshl_b32 s28, s26, 7\ns_add_u32 s27, s27, s28")
        S("s_mov_b32 s28, 4608")
        S("v_lshrrev_b32 v8, 2, v3\nv_lshlrev_b32 v8, 4, v8\nv_and_b32 v9, 3, v3\nv_add_u32 v8, v8, v9\nv_mul_u32_u24 v8, 1152, v8\nv_add_u32 v8, v8, v4")
        S("s_lshr_b32 s29, s25, 2\ns_and_b32 s3, s25, 3\ns_lshl_b32 s36, s3, 2\ns_cmp_eq_u32 s3, 3\ns_cselect_b32 s36, 15, s36\ns_add_u32 s29, s29, s36")
        S("s_add_u32 s3, s25, 3\ns_cmp_ge_u32 s25, 16\ns_cselect_b32 s29, s3, s29")
        S(f"s_branch LBC_{L}")
        S(f"LC_{L}:")
        S("s_sub_u32 s24, s24, 324")
        S("s_mul_i32 s25, s24, 7282\ns_lshr_b32 s25, s25, 16\ns_mul_i32 s26, s25, 9\ns_sub_u32 s26, s24, s26")
        S("s_mov_b32 s12, s52\ns_and_b32 s13, s53, 0xffff\ns_mov_b32 s14, 663552")
        S("s_mul_i32 s27, s5, 82944\ns_lshl_b32 s28, s26, 7\ns_add_u32 s27, s27, s28")
        S("s_mov_b32 s28, 20736")
        S("s_lshl_b32 s3, s25, 3\nv_add_u32 v8, s3, v3\nv_min_u32 v8, 17, v8\nv_mul_u32_u24 v8, 1152, v8\nv_add_u32 v8, v8, v4")
        S("s_add_u32 s29, s25, 12")
        S(f"LBC_{L}:")
        S(f"s_mul_i32 s3, s26, 84\ns_add_u32 s29, s29, s3\ns_lshl_b32 s29, s29, 10\ns_mul_i32 s3, s5, 774144\ns_add_u32 s29, s29, s3\ns_add_u32 s{DB}, s29, {W4S}")
        S(f"s_mov_b32 s{TS}, {21*1024}")
        if rnd == 2:
            S(f"s_add_u32 s3, s6, 256\ns_cmp_ge_u32 s3, 351\ns_cselect_b32 s{DB}, {OOB}, s{DB}")
        S(f"LG_{L}:")
        for d in range(4):
            S(f"s_add_u32 m0, s7, {rnd*4096 + d*1024}")
            S(f"buffer_load_dwordx4 v8, s[12:15], s27 offen lds")
            S("s_add_u32 s27, s27, s28")
    for rnd in range(3):
        DB, TS = 30 + 2*rnd, 31 + 2*rnd
        S(f"s_waitcnt vmcnt({4*(2-rnd) + 4*rnd})")
        for tb in range(4):
            b = 16 + rnd*16 + tb*4
            S(f"ds_read_b64_tr_b16 {v(b,2)}, v5 offset:{rnd*4096 + tb*32}")
            S(f"ds_read_b64_tr_b16 {v(b+2,2)}, v5 offset:{rnd*4096 + tb*32 + 512}")
        S("s_waitcnt lgkmcnt(0)")
        for tb in range(4):
            b = 16 + rnd*16 + tb*4
            S(f"buffer_store_dwordx4 {v(b,4)}, v7, s[16:19], s{DB} offen")
            S(f"s_add_u32 s{DB}, s{DB}, s{TS}")
    S(f"Lend_{name}:\ns_endpgm")
    txt, rep = finalize(S)
    return f".globl {name}\n.p2align 8\n.type {name},@function\n" + txt, kd(name, vgpr=64, accum=64)
```

```python
S_ROWS = 2048
D = 576
FLAGS = 0
F_H   = FLAGS
F_HS  = F_H + 128*128
F_KV  = F_HS + 128*128
F_O   = F_KV + 128*128
F_P   = F_O + 128*128
F_SH  = F_P + 32*9*128
F_END = F_SH + 8*2*512
FLAGS_BYTES = 128*1024
assert F_END <= FLAGS_BYTES
G_BUF  = FLAGS_BYTES
HS_BUF = G_BUF + 32*73728
KV_BUF = HS_BUF + 32*73728
O_BUF  = KV_BUF + 128*9216
P_BUF  = O_BUF + 256*12288
W3S    = P_BUF + 32*9*8*8192
W4S    = W3S + 8*663552
TS_BUF = W4S + 8*774144
DBG_BUF = TS_BUF + 256*4*256
WS_USED = DBG_BUF + (8 << 20)
WS_RECORDS = 0x4000000
assert WS_USED <= WS_RECORDS
OOB = 0x40000000

def pos_of_beta(beta):
    if beta >= 16: return 19 + (beta - 16)
    w, u = beta >> 2, beta & 3
    return 4*u + w if u < 3 else 15 + w
```

```python
import sys, struct, math
from asmlib import *
from layout import *
from gen_shuf import gen_shuffle_kernel, srd

KNAME = "parallel_sum__sliding_local_dilated__mixer_s_mlp__prompt"

def fbits(x):
    return "0x%08x" % struct.unpack("<I", struct.pack("<f", x))[0]

class Opt:
    span = 4
    ts = False
    ring = 14
    spin = 1 << 14
    batches = [(4, [8, 1]), (6, [2, 3]), (8, [4, 5])]
    warm = True
    nempty = 0
    nshuf = 0

sW, sJ, sC, sT = 4, 5, 6, 7
X_SRD, W_SRD, WS, OUT = "s[8:11]", "s[12:15]", "s[16:19]", "s[20:23]"
sLB = 24
sSO = 25
sCNT = 26
sT0, sT1, sT2, sT3 = 27, 28, 29, 30
sC0, sC1 = 32, 34
sONE = 36
sLO, sHI = 38, 39
sONES = 40
sMSK = 41
sWS = 42
sM = 43
sCB = 44
sPB = 45
sSUP = 46
sID = 47
pX, pQKV, pWO, pW1, pW2, pOUT, pDBG, pWS = 48, 50, 52, 56, 58, 64, 66, 68
sTS = 72

vL, vR, vK = 1, 2, 3
vDA = 4
vTR = 13
XN0, XN1 = 16, 88
AG = 256
FRAG = AG + 64
LDS_O, LDS_ST = 147456, 159744
LDS_H = 73728

class Gen:
    def __init__(self, opt):
        self.o = opt
        self.nts = 0
        self.tsnames = []
        self.nlab = 0

    def lab(self, p):
        self.nlab += 1
        return f"L{p}{self.nlab}"

    def ts(self, S, name, idx=None):
        if not self.o.ts: return
        if idx is None:
            idx = self.nts; self.nts += 1; self.tsnames.append(name)
        assert idx < 15
        S(f"s_memrealtime s[{sTS+2*idx}:{sTS+2*idx+1}]")
        return idx

    def poll(self, S, vaddr, vdst, soff, mask, first_issued=None):
        L, Dn = self.lab("p"), self.lab("d")
        if first_issued is not None:
            S.wait(first_issued)
            S(f"v_cmp_eq_u32 vcc, 0, {v(vdst)}")
            S(f"s_and_b32 vcc_lo, vcc_lo, {mask}")
            S(f"s_cbranch_scc0 {Dn}")
        S(f"s_mov_b32 s{sCNT}, {self.o.spin}")
        S(f"{L}:")
        S(f"buffer_load_dword {v(vdst)}, {v(vaddr)}, {WS}, {soff} offen sc1")
        it = S.items[-1]
        if first_issued is not None:
            it.tok = None
            S.items.append(Ins("s_waitcnt vmcnt(0) ; slow"))
            S.items[-1].op = "s_waitcnt_slow"
        else:
            S("s_waitcnt vmcnt(0)")
        S(f"v_cmp_eq_u32 vcc, 0, {v(vdst)}")
        S(f"s_and_b32 vcc_lo, vcc_lo, {mask}")
        S(f"s_cbranch_scc0 {Dn}")
        S(f"s_sleep 1\ns_sub_u32 s{sCNT}, s{sCNT}, 1\ns_cbranch_scc0 {L}")
        S(f"{Dn}:")

    def xreduce(self, S, regs, tmp):
        for op in ("v_permlane16_swap_b32", "v_permlane32_swap_b32"):
            for i, x in enumerate(regs): S(f"v_mov_b32 {v(tmp+i)}, {v(x)}")
            for i, x in enumerate(regs): S(f"{op} {v(tmp+i)}, {v(x)}")
            for i, x in enumerate(regs): S(f"v_add_f32 {v(x)}, {v(tmp+i)}, {v(x)}")

    def stats_finish(self, S, s1, s2, st, tmp, r2=None):
        self.xreduce(S, [s1, s2], tmp)
        S(f"v_mul_f32 {v(s1)}, {fbits(1/576)}, {v(s1)}")
        S(f"v_mul_f32 {v(tmp)}, {v(s1)}, {v(s1)}")
        S(f"v_mul_f32 {v(s2)}, {fbits(1/576)}, {v(s2)}")
        S(f"v_sub_f32 {v(s2)}, {v(s2)}, {v(tmp)}")
        S(f"v_max_f32 {v(s2)}, 0, {v(s2)}")
        S(f"v_add_f32 {v(tmp)}, {fbits(1e-5)}, {v(s2)}")
        S(f"v_rsq_f32 {v(st)}, {v(tmp)}")
        S(f"v_mul_f32 {v(st+1)}, -{v(s1)}, {v(st)}")
        if r2 is not None:
            S(f"v_mul_f32 {v(tmp)}, {v(st)}, {v(st)}")
            S(f"v_mul_f32 {v(tmp)}, {v(tmp)}, {v(s2)}")
            S(f"v_add_f32 {v(tmp)}, {fbits(1e-5)}, {v(tmp)}")
            S(f"v_rsq_f32 {v(r2)}, {v(tmp)}")

    def x_stats(self, S, base, toks, acc):
        for i in range(4): S(f"v_mov_b32 {v(acc+i)}, 0")
        for i in range(18):
            S.wait(toks[i])
            for d in range(4):
                x = base + 4*i + d
                S(f"v_dot2c_f32_bf16 {v(acc + 2*(d&1))}, s{sONES}, {v(x)}")
                S(f"v_dot2c_f32_bf16 {v(acc + 1 + 2*(d&1))}, {v(x)}, {v(x)}")
        S(f"v_add_f32 {v(acc)}, {v(acc)}, {v(acc+2)}")
        S(f"v_add_f32 {v(acc+1)}, {v(acc+1)}, {v(acc+3)}")

    def norm_step(self, base, st, tmp):
        F = Stream()
        for h in range(2):
            for d in (2*h, 2*h+1):
                t = tmp + 2*(d & 1)
                F(f"v_lshlrev_b32 {v(t)}, 16, {v(base+d)}")
                F(f"v_and_b32 {v(t+1)}, s{sMSK}, {v(base+d)}")
            for d in (2*h, 2*h+1):
                t = tmp + 2*(d & 1)
                F(f"v_fma_f32 {v(t)}, {v(t)}, {v(st)}, {v(st+1)}")
                F(f"v_fma_f32 {v(t+1)}, {v(t+1)}, {v(st)}, {v(st+1)}")
            for d in (2*h, 2*h+1):
                t = tmp + 2*(d & 1)
                F(f"v_cvt_pk_bf16_f32 {v(base+d)}, {v(t)}, {v(t+1)}")
        return F

    def dma_round(self, S, slot4, addr=vDA):
        toks = []
        for d in range(9):
            if d % 4 == 0:
                S(f"s_add_u32 m0, s{sLB}, {slot4*4*9216 + d*1024}")
            toks.append(S(f"buffer_load_dwordx4 {v(addr+d)}, {W_SRD}, s{sSO} offen offset:{(d%4)*1024} lds"))
        return toks[-1]

    def narrow(self, S, evs, pre, post, PD=6):
        rt = {}
        def rd(n):
            if n >= len(evs): return
            if n in pre: S.extend(pre[n])
            slot, off, _ = evs[n]
            f = FRAG + 4*(n % 8)
            o = (slot % 6)*9216 + off
            S(f"ds_read_b64_tr_b16 {r(f,2)}, {v(vTR + slot//6)} offset:{o}")
            rt[n] = S(f"ds_read_b64_tr_b16 {r(f+2,2)}, {v(vTR + slot//6)} offset:{o+2304}")
        for n in range(PD): rd(n)
        for n, (slot, off, mf) in enumerate(evs):
            f = FRAG + 4*(n % 8)
            S.wait(rt[n])
            fill = post.get(n, Stream()).items
            for k, (acc, b, first) in enumerate(mf):
                S(f"v_mfma_f32_16x16x32_bf16 {r(acc,4)}, {r(f,4)}, {r(b,4)}, {'0' if first else r(acc,4)}")
                if k == 0: rd(n + PD)
                lo, hi = len(fill)*k//len(mf), len(fill)*(k+1)//len(mf)
                S.extend(fill[lo:hi])

    def spread(self, post, n0, n1, F):
        k = n1 - n0
        for i in range(k):
            lo, hi = len(F.items)*i//k, len(F.items)*(i+1)//k
            post.setdefault(n0+i, Stream()).extend(F.items[lo:hi])

    def pack_store(self, S, acc, va, va8, soff_base, pk):
        tok = None
        for t in range(0, 9, 2):
            p = pk + 4*((t//2) % 2)
            for u in range(2 if t < 8 else 1):
                S(f"v_cvt_pk_bf16_f32 {v(p+2*u)}, {v(acc+4*(t+u))}, {v(acc+4*(t+u)+1)}")
                S(f"v_cvt_pk_bf16_f32 {v(p+2*u+1)}, {v(acc+4*(t+u)+2)}, {v(acc+4*(t+u)+3)}")
            S(f"s_add_u32 s{sT0}, s{soff_base}, {t*2048}")
            S(f"v_permlane16_swap_b32 {v(p)}, {v(p+2)}")
            S(f"v_permlane16_swap_b32 {v(p+1)}, {v(p+3)}")
            tok = S(f"buffer_store_dwordx4 {v(p,4)}, {v(va if t < 8 else va8)}, {WS}, s{sT0} offen sc1")
        return tok

    def gelu_pk(self, S, acc, n, tmp, c0, scale=None):
        G = 4
        for g in range(0, n, G):
            xs = [acc+g+2*i for i in range(G//2)]
            tsr = [tmp+2*i for i in range(G//2)]
            if scale is not None:
                for x in xs: S(f"v_pk_mul_f32 {v(x,2)}, {v(x,2)}, {v(scale,2)} op_sel_hi:[1,0]")
            for x, t in zip(xs, tsr): S(f"v_pk_mul_f32 {v(t,2)}, {v(x,2)}, {v(x,2)}")
            for x, t in zip(xs, tsr): S(f"v_pk_fma_f32 {v(t,2)}, {v(t,2)}, {s(sC1,2)}, {v(c0,2)} op_sel_hi:[1,1,0]")
            for x, t in zip(xs, tsr): S(f"v_pk_mul_f32 {v(t,2)}, {v(t,2)}, {v(x,2)}")
            for i in range(G): S(f"v_exp_f32 {v(tmp+i)}, {v(tmp+i)}")
            for x, t in zip(xs, tsr): S(f"v_pk_add_f32 {v(t,2)}, {v(t,2)}, {s(sONE,2)}")
            for i in range(G): S(f"v_rcp_f32 {v(tmp+i)}, {v(tmp+i)}")
            for x, t in zip(xs, tsr): S(f"v_pk_mul_f32 {v(x,2)}, {v(x,2)}, {v(t,2)}")

    def prologue(self, S, name):
        o = self.o
        S(f"{name}:")
        S(f"s_cmp_ge_u32 s2, 256\ns_cbranch_scc1 Lend")
        S("s_load_dwordx16 s[48:63], s[0:1], 0\ns_load_dwordx4 s[64:67], s[0:1], 64\ns_load_dwordx2 s[68:69], s[0:1], 80")
        self.ts(S, "start")
        S(f"v_and_b32 v{vL}, 63, v0\nv_lshrrev_b32 v4, 6, v0\nv_and_b32 v{vR}, 15, v0\nv_bfe_u32 v{vK}, v0, 4, 2")
        S(f"v_readfirstlane_b32 s{sW}, v4\ns_mov_b32 s{sID}, s2")
        if o.span == 8:
            S(f"s_and_b32 s{sJ}, s2, 7\ns_lshr_b32 s{sC}, s2, 3")
        elif o.span == 4:
            S(f"s_and_b32 s{sJ}, s2, 3\ns_lshl_b32 s{sJ}, s{sJ}, 1\ns_bfe_u32 s3, s2, 0x10003\ns_add_u32 s{sJ}, s{sJ}, s3")
            S(f"s_bfe_u32 s{sC}, s2, 0x10002\ns_lshl_b32 s{sC}, s{sC}, 4\ns_lshr_b32 s3, s2, 4\ns_add_u32 s{sC}, s{sC}, s3")
        elif o.span == 2:
            S(f"s_and_b32 s{sJ}, s2, 1\ns_lshl_b32 s{sJ}, s{sJ}, 2\ns_bfe_u32 s3, s2, 0x20003\ns_add_u32 s{sJ}, s{sJ}, s3")
            S(f"s_bfe_u32 s{sC}, s2, 0x20001\ns_lshl_b32 s{sC}, s{sC}, 3\ns_lshr_b32 s3, s2, 5\ns_add_u32 s{sC}, s{sC}, s3")
        S(f"s_lshl_b32 s{sT}, s{sC}, 2\ns_add_u32 s{sT}, s{sT}, s{sW}")
        S(f"s_mul_i32 s{sCB}, s{sC}, 73728\ns_mul_i32 s{sLB}, s{sW}, 9216\ns_and_b32 s{sM}, s{sJ}, 3\ns_lshr_b32 s{sSUP}, s{sC}, 1")
        S(f"v_lshl_add_u32 v4, v4, 4, v{vR}\nv_mul_u32_u24 v4, 1152, v4\nv_lshl_add_u32 v0, v{vK}, 4, v4")
        k0 = -2*math.sqrt(2/math.pi)*math.log2(math.e)
        S(f"s_mov_b32 s{sC0}, {fbits(k0)}\ns_mov_b32 s{sC1}, {fbits(k0*0.044715)}\ns_mov_b32 s{sC1+1}, s{sC1}")
        S(f"s_mov_b32 s{sONE}, 1.0\ns_mov_b32 s{sONE+1}, 1.0\ns_mov_b32 s{sLO}, 0x3f80\ns_mov_b32 s{sHI}, 1.0")
        S(f"s_mov_b32 s{sONES}, 0x3f803f80\ns_mov_b32 s{sMSK}, 0xffff0000")
        S("s_waitcnt lgkmcnt(0)")
        srd(S, 8, pX, 2359296)
        srd(S, 16, pWS, WS_RECORDS)
        srd(S, 20, pOUT, 2359296)

    def dma_lane_parts(self, S, d, vk, vc, tmp):
        S(f"v_add_u32 {v(tmp)}, {64*d}, v{vL}")
        S(f"v_mul_u32_u24 {v(vk)}, 3641, {v(tmp)}\nv_lshrrev_b32 {v(vk)}, 16, {v(vk)}")
        S(f"v_mul_u32_u24 {v(vc)}, 18, {v(vk)}\nv_sub_u32 {v(vc)}, {v(tmp)}, {v(vc)}")
        S(f"v_lshrrev_b32 {v(tmp)}, 1, {v(vk)}\nv_xor_b32 {v(tmp)}, {v(tmp)}, {v(vk)}\nv_and_b32 {v(tmp)}, 4, {v(tmp)}")
        S(f"v_mul_u32_u24 {v(tmp)}, 3, {v(tmp)}\nv_xor_b32 {v(vk)}, {v(tmp)}, {v(vk)}")

    def tr_bases(self, S, tmp):
        S(f"v_lshrrev_b32 {v(tmp)}, 1, v{vK}\nv_lshlrev_b32 {v(tmp)}, 2, {v(tmp)}\nv_and_b32 {v(tmp+1)}, 1, v{vK}\nv_add_u32 {v(tmp)}, {v(tmp)}, {v(tmp+1)}")
        S(f"v_bfe_u32 {v(tmp+1)}, v{vL}, 2, 2\nv_lshl_add_u32 {v(tmp)}, {v(tmp)}, 2, {v(tmp+1)}\nv_mul_u32_u24 {v(tmp)}, 288, {v(tmp)}")
        S(f"v_and_b32 {v(tmp+1)}, 3, v{vL}\nv_lshl_add_u32 v{vTR}, {v(tmp+1)}, 3, {v(tmp)}")
        S(f"v_add_u32 v{vTR+1}, 55296, v{vTR}\nv_add_u32 v{vTR+2}, 110592, v{vTR}")

    def code_prefetch(self, S, vt):
        S(f"s_getpc_b64 s[{sT1}:{sT2}]")
        S(f"Lpc{self.nlab}:")
        S(f"s_lshr_b32 s{sT0}, s{sID}, 3\ns_and_b32 s{sT0}, s{sT0}, 1\ns_lshl_b32 s{sT0}, s{sT0}, 2\ns_add_u32 s{sT0}, s{sT0}, s{sW}\ns_lshl_b32 s{sT0}, s{sT0}, 13")
        S(f"v_lshl_add_u32 {v(vt)}, v{vL}, 7, s{sT0}")
        S(f"v_min_u32 {v(vt)}, Lend-Lpc{self.nlab}, {v(vt)}")
        self.nlab += 1
        return S(f"global_load_dword {v(vt)}, {v(vt)}, s[{sT1}:{sT2}]")

    def warm(self, S, vt, base, nbytes):
        o = self.o
        share = 4*o.span
        lines = nbytes // 128
        per = -(-lines // (share*4*64))
        S(f"s_and_b32 s{sT0}, s{sC}, {share-1}\ns_lshl_b32 s{sT0}, s{sT0}, 2\ns_add_u32 s{sT0}, s{sT0}, s{sW}")
        pw = -(-lines // (share*4))
        S(f"s_mul_i32 s{sT0}, s{sT0}, {pw*128}\ns_mul_i32 s{sT1}, s{sJ}, {nbytes}\ns_add_u32 s{sT0}, s{sT0}, s{sT1}\ns_add_u32 s{sT0}, s{sT0}, {base}")
        toks = []
        for i in range(per):
            n = min(64, pw - 64*i)
            S(f"v_min_u32 {v(vt+i)}, {n-1}, v{vL}\nv_lshlrev_b32 {v(vt+i)}, 7, {v(vt+i)}")
            toks.append(S(f"buffer_load_dword {v(vt+i)}, {v(vt+i)}, {WS}, s{sT0} offen"))
            if i + 1 < per: S(f"s_add_u32 s{sT0}, s{sT0}, 8192")
        return toks

    def role_mix(self, S):
        ACC, ST, R2, C0V, TMP, PK = 160, 196, 198, 200, 204, 212
        VA, VA8, VH, VH8, VF, VP, VG, VONE, VPD = 220, 221, 222, 223, 224, 225, 226, 227, 228
        G = 88
        xt = [S(f"buffer_load_dwordx4 {v(XN0+4*i,4)}, v0, {X_SRD}, s{sCB} offen offset:{64*i}") for i in range(18)]
        srd(S, 12, pW1, 663552)
        S(f"s_mul_i32 s{sT0}, s{sM}, 288")
        for d in range(9):
            self.dma_lane_parts(S, d, TMP, TMP+1, TMP+2)
            S(f"v_mul_u32_u24 {v(TMP)}, 1152, {v(TMP)}\nv_lshl_add_u32 {v(TMP)}, {v(TMP+1)}, 4, {v(TMP)}")
            S(f"v_add_u32 {v(TMP)}, s{sT0}, {v(TMP)}\nv_subrev_u32 {v(vDA+d)}, {(d%4)*1024}, {v(TMP)}")
        dt = {}
        S(f"s_mul_i32 s{sSO}, s{sW}, 36864")
        for u in range(4):
            dt[u] = self.dma_round(S, u)
            S(f"s_add_u32 s{sSO}, s{sSO}, {4*36864}")
        cp = self.code_prefetch(S, 230)
        self.tr_bases(S, TMP)
        S(f"s_lshl_b32 s{sT0}, s{sT}, 4\ns_lshr_b32 s{sT1}, s{sM}, 1\ns_add_u32 s{sT1}, s{sT1}, 1\ns_sub_u32 s{sT2}, 0, s{sT1}")
        S(f"s_bitcmp1_b32 s{sM}, 0\ns_cselect_b32 s{sT1}, s{sT2}, s{sT1}\ns_add_u32 s{sT0}, s{sT0}, s{sT1}")
        S(f"v_add_u32 {v(TMP+3)}, s{sT0}, v{vR}")
        S(f"v_and_b32 {v(TMP)}, 2047, {v(TMP+3)}\nv_lshrrev_b32 {v(TMP+1)}, 6, {v(TMP)}\nv_mul_u32_u24 {v(TMP+1)}, 73728, {v(TMP+1)}")
        S(f"v_and_b32 {v(TMP)}, 63, {v(TMP)}\nv_lshl_add_u32 {v(VA)}, {v(TMP)}, 4, {v(TMP+1)}")
        S(f"v_and_b32 {v(TMP)}, 1, v{vK}\nv_lshrrev_b32 {v(TMP+1)}, 1, v{vK}\nv_lshl_add_u32 {v(TMP+1)}, {v(TMP)}, 1, {v(TMP+1)}\nv_lshlrev_b32 {v(TMP+1)}, 10, {v(TMP+1)}")
        S(f"v_add_u32 {v(VA)}, {v(VA)}, {v(TMP+1)}")
        S(f"s_lshl_b32 s{sT0}, s{sW}, 8\ns_add_u32 s{sT0}, s{sT0}, s{sCB}\nv_lshl_add_u32 {v(VH)}, v{vR}, 4, s{sT0}")
        S(f"v_lshl_add_u32 {v(VG)}, v{vK}, 10, {v(VH)}")
        S(f"v_add_u32 {v(VH)}, {v(VH)}, {v(TMP+1)}")
        S(f"v_mov_b32 {v(TMP+2)}, {OOB}\nv_cmp_eq_u32 vcc, 0, {v(TMP)}")
        S(f"v_cndmask_b32 {v(VA8)}, {v(TMP+2)}, {v(VA)}, vcc\nv_cndmask_b32 {v(VH8)}, {v(TMP+2)}, {v(VH)}, vcc")
        S(f"s_lshl_b32 s{sT0}, s{sT}, 7\ns_lshl_b32 s{sT1}, s{sM}, 2\ns_add_u32 s{sT0}, s{sT0}, s{sT1}\nv_mov_b32 {v(TMP)}, s{sT0}")
        S(f"v_cmp_eq_u32 vcc, 0, v{vL}\nv_cndmask_b32 {v(VF)}, {v(TMP+2)}, {v(TMP)}, vcc\nv_mov_b32 {v(VONE)}, 1")
        S(f"s_add_u32 s{sT0}, s{sT}, 127\nv_lshrrev_b32 {v(TMP)}, 2, v{vL}\nv_add_u32 {v(TMP)}, s{sT0}, {v(TMP)}\nv_and_b32 {v(TMP)}, 127, {v(TMP)}")
        S(f"v_and_b32 {v(TMP+1)}, 3, v{vL}\nv_lshlrev_b32 {v(TMP+1)}, 2, {v(TMP+1)}\nv_lshl_add_u32 {v(TMP)}, {v(TMP)}, 7, {v(TMP+1)}")
        S(f"v_cmp_gt_u32 vcc, 12, v{vL}\nv_cndmask_b32 {v(VP)}, {v(TMP+2)}, {v(TMP)}, vcc")
        S(f"v_mov_b32 {v(C0V)}, s{sC0}\nv_cmp_gt_u32 s[{sT1}:{sT2}], 0x800, {v(TMP+3)}".replace(f"v_cmp_gt_u32 s[{sT1}:{sT2}], 0x800, {v(TMP+3)}", f"v_cmp_gt_u32 vcc, 0x800, {v(TMP+3)}\nv_cndmask_b32 {v(VPD+1)}, 0, {v(VONE)}, vcc"))
        self.x_stats(S, XN0, xt, TMP+4)
        self.stats_finish(S, TMP+4, TMP+5, ST, TMP, r2=R2)
        S(f"v_cmp_ne_u32 vcc, 0, {v(VPD+1)}\nv_cndmask_b32 {v(R2)}, 0, {v(R2)}, vcc")
        self.stash_stats(S, ST, TMP)
        self.ts(S, "stats", 1)
        S.extend(self.norm_step(XN0, ST, TMP))
        evs, pre, post = [], {}, {}
        for i in range(18):
            for t in range(9):
                evs.append((i % 16, 32*t, [(ACC+4*t, XN0+4*i, i == 0)]))
            if i < 17: self.spread(post, 9*i, 9*i+8, self.norm_step(XN0+4*(i+1), ST, TMP))
        def bar(u, nxt, extra=None):
            P = Stream()
            P.wait(dt[u]); P("s_barrier")
            if extra: P(extra)
            if nxt is not None:
                dt[nxt] = self.dma_round(P, nxt % 4)
            return P
        pre[0] = bar(0, None); pre[36] = bar(1, None)
        pre[72] = bar(2, 4, f"s_cmp_ge_u32 s{sW}, 2\ns_cselect_b32 s12, s{pW2}, s{pW1}\ns_cselect_b32 s13, s{pW2+1}, s{pW1+1}\n"
                            f"s_cselect_b32 s{sT0}, 663552, 0\ns_and_b32 s13, s13, 0xffff\ns_sub_u32 s{sSO}, s{sSO}, s{sT0}")
        pre[108] = bar(3, 5, f"s_mov_b32 s12, s{pW2}\ns_and_b32 s13, s{pW2+1}, 0xffff\ns_mul_i32 s{sSO}, s{sW}, 36864\ns_add_u32 s{sSO}, s{sSO}, {2*36864}")
        pre[144] = bar(4, 6, f"s_add_u32 s{sSO}, s{sSO}, {4*36864}")
        self.narrow(S, evs, pre, post)
        self.ts(S, "hgemm", 2)
        self.gelu_pk(S, ACC, 36, TMP, C0V, scale=R2)
        S(f"s_mul_i32 s{sT3}, s{sM}, 18432\ns_add_u32 s{sT3}, s{sT3}, {G_BUF}")
        tok = self.pack_store(S, ACC, VA, VA8, sT3, PK)
        S("s_barrier")
        S(f"s_add_u32 s{sSO}, s{sSO}, {4*36864}")
        dt[7] = self.dma_round(S, 3)
        S.wait(tok, cp)
        S(f"s_mov_b32 s{sT0}, {F_H}")
        S(f"buffer_store_dword {v(VONE)}, {v(VF)}, {WS}, s{sT0} offen sc1")
        self.ts(S, "hflag", 3)
        self.poll(S, VP, VPD, f"s{sT0}", 0b1010_1111_0101)
        self.ts(S, "hpoll", 4)
        gt = []
        for i in range(18):
            S(f"s_mov_b32 s{sT0}, {G_BUF + 4096*i}")
            gt.append(S(f"buffer_load_dwordx4 {v(G+4*i,4)}, {v(VG)}, {WS}, s{sT0} offen sc1"))
        evs, pre, post = [], {}, {}
        for i in range(18):
            for t in range(9):
                evs.append(((i + 18) % 16, 32*t, [(ACC+4*t, G+4*i, i == 0)]))
            if i < 17:
                P = Stream(); P.wait(gt[i+1]); post[9*i+8] = P
        pre[0] = Stream(); pre[0]("s_barrier")
        pre[54] = Stream(); pre[54]("s_barrier")
        pre[54](f"s_add_u32 s{sSO}, s{sSO}, {4*36864}")
        dt[8] = self.dma_round(pre[54], 0)
        pre[126] = bar(8, None)
        pre[5] = Stream(); pre[5].wait(gt[0])
        self.narrow(S, evs, pre, post)
        self.ts(S, "hsgemm", 5)
        S(f"s_mul_i32 s{sT3}, s{sM}, 18432\ns_add_u32 s{sT3}, s{sT3}, {HS_BUF}")
        tok = self.pack_store(S, ACC, VH, VH8, sT3, PK)
        wt = self.warm(S, 232, W3S, 663552) if self.o.warm else []
        S.wait(tok)
        S(f"s_mov_b32 s{sT0}, {F_HS}")
        S(f"buffer_store_dword {v(VONE)}, {v(VF)}, {WS}, s{sT0} offen sc1")
        self.unpack_xn(S, XN0)
        S.wait(wt)

    def stash_stats(self, S, st, tmp):
        S(f"s_lshl_b32 s{sT0}, s{sW}, 7\ns_add_u32 s{sT0}, s{sT0}, {LDS_ST}\nv_lshl_add_u32 {v(tmp)}, v{vR}, 3, s{sT0}")
        S(f"ds_write_b64 {v(tmp)}, {v(st,2)}")

    def unpack_xn(self, S, base):
        for i in range(71, -1, -1):
            S(f"v_and_b32 {v(88+2*i+1)}, s{sMSK}, {v(base+i)}")
            S(f"v_lshlrev_b32 {v(88+2*i)}, 16, {v(base+i)}")

    def role_att(self, S):
        AK = 160
        AV = AG + 96
        AH = AG + 128
        KP = 200
        V4 = 220
        QA = 228
        ST0, ST1, TMP = 238, 240, 242
        KB, VB, QB = 0, 27648, 73728
        DUM = 110592
        S(f"s_mul_i32 s{sT0}, s{sSUP}, 147456\ns_add_u32 s{sT1}, s{sT0}, 73728")
        xt0 = [S(f"buffer_load_dwordx4 {v(XN0+4*i,4)}, v0, {X_SRD}, s{sT0} offen offset:{64*i}") for i in range(18)]
        xt1 = [S(f"buffer_load_dwordx4 {v(XN1+4*i,4)}, v0, {X_SRD}, s{sT1} offen offset:{64*i}") for i in range(18)]
        srd(S, 12, pQKV, 1990656)
        S(f"s_mul_i32 s{sT0}, s{sJ}, 144")
        S(f"v_mov_b32 {v(TMP+4)}, {1152+1008}\nv_mov_b32 {v(TMP+5)}, {110592-144}\nv_mov_b32 {v(TMP+6)}, 1152")
        for d in range(9):
            self.dma_lane_parts(S, d, TMP, TMP+1, TMP+2)
            S(f"v_mul_u32_u24 {v(TMP)}, 3456, {v(TMP)}\nv_lshl_add_u32 {v(TMP)}, {v(TMP+1)}, 4, {v(TMP)}")
            S(f"v_cmp_lt_u32 vcc, 8, {v(TMP+1)}")
            S(f"v_add_u32 {v(TMP)}, s{sT0}, {v(TMP)}\nv_subrev_u32 {v(TMP)}, {(d%4)*1024}, {v(TMP)}")
            S(f"v_cndmask_b32 {v(TMP+1)}, {v(TMP+6)}, {v(TMP+4)}, vcc\nv_cndmask_b32 {v(TMP+2)}, 0, {v(TMP+5)}, vcc")
            S(f"v_add_u32 {v(vDA+d)}, {v(TMP)}, {v(TMP+1)}\nv_add_u32 {v(QA+d)}, {v(TMP)}, {v(TMP+2)}")
        dt = {}
        S(f"s_mul_i32 s{sSO}, s{sW}, 110592")
        for u in range(2):
            dt[u] = self.dma_round(S, u)
            S(f"s_add_u32 s{sSO}, s{sSO}, {4*110592}")
        self.tr_bases(S, TMP)
        self.x_stats(S, XN0, xt0, TMP+4)
        for u in range(2, 4):
            dt[u] = self.dma_round(S, u)
            S(f"s_add_u32 s{sSO}, s{sSO}, {4*110592}")
        cp = self.code_prefetch(S, 255)
        self.stats_finish(S, TMP+4, TMP+5, ST0, TMP)
        self.x_stats(S, XN1, xt1, TMP+4)
        self.stats_finish(S, TMP+4, TMP+5, ST1, TMP)
        S(f"s_bitcmp1_b32 s{sC}, 0\ns_cselect_b64 vcc, -1, 0")
        S(f"v_cndmask_b32 {v(TMP+2)}, {v(ST0)}, {v(ST1)}, vcc\nv_cndmask_b32 {v(TMP+3)}, {v(ST0+1)}, {v(ST1+1)}, vcc")
        self.stash_stats(S, TMP+2, TMP)
        self.ts(S, "stats", 1)
        def akv(t, z): return AK + 8*t + 4*z if t < 5 else AV + 8*(t-5) + 4*z
        def both(i):
            F = self.norm_step(XN0+4*i, ST0, TMP); F.extend(self.norm_step(XN1+4*i, ST1, TMP+4)); return F
        S.extend(both(0))
        evs, pre, post = [], {}, {}
        for i in range(18):
            for t in range(9):
                evs.append((i % 16, 32*t, [(akv(t,0), XN0+4*i, i == 0), (akv(t,1), XN1+4*i, i == 0)]))
            if i < 17: self.spread(post, 9*i, 9*i+8, both(i+1))
        def bar(u, nxt, extra=None, addr=vDA):
            P = Stream()
            P.wait(dt[u]); P("s_barrier")
            if extra: P(extra)
            if nxt is not None:
                dt[nxt] = self.dma_round(P, nxt % 4, addr)
            return P
        L = self.lab("q")
        sw = f"s_cmp_lt_u32 s{sW}, 2\ns_cbranch_scc1 {L}\n" + "\n".join(f"v_mov_b32 {v(vDA+d)}, {v(QA+d)}" for d in range(9)) + \
             f"\ns_sub_u32 s{sSO}, s{sW}, 2\ns_mul_i32 s{sSO}, s{sSO}, 221184\n{L}:"
        pre[0] = bar(0, None); pre[36] = bar(1, None)
        pre[72] = bar(2, 4, sw)
        pre[108] = bar(3, 5, f"s_add_u32 s{sSO}, s{sW}, 2\ns_mul_i32 s{sSO}, s{sSO}, 221184", QA)
        pre[144] = bar(4, 6, f"s_add_u32 s{sSO}, s{sSO}, {4*221184}", QA)
        self.narrow(S, evs, pre, post)
        self.ts(S, "kvgemm", 2)
        S(f"s_lshl_b32 s{sT3}, s{sSUP}, 3\ns_add_u32 s{sT3}, s{sT3}, s{sJ}")
        S(f"s_mul_i32 s{sT0}, s{sT3}, 9216\ns_add_u32 s{sT0}, s{sT0}, {KV_BUF}\ns_cmp_eq_u32 s{sW}, 3\ns_cselect_b32 s{sT0}, s{sT0}, {OOB}")
        S(f"v_lshlrev_b32 {v(vDA)}, 4, v{vL}")
        for t in range(9):
            if t % 4 == 0 and t: S(f"s_add_u32 s{sT0}, s{sT0}, 4096")
            tok = S(f"buffer_store_dwordx4 {r(akv(t,1),4)}, {v(vDA)}, {WS}, s{sT0} offen offset:{(t%4)*1024} sc1")
        for z in range(2):
            for t in range(5):
                for e in range(2):
                    S(f"v_cvt_pk_bf16_f32 {v(KP+10*z+2*t+e)}, {v(akv(t,z)+2*e)}, {v(akv(t,z)+2*e+1)}")
            for e in range(4): S(f"v_mov_b32 {v(V4+4*z+e)}, {v(akv(4,z)+e)}")
        evs, pre, post = [], {}, {}
        for i in range(18):
            for t in range(5):
                evs.append(((18 + i//2) % 16, 144*(i & 1) + 32*t, [(akv(t,0), XN0+4*i, i == 0), (akv(t,1), XN1+4*i, i == 0)]))
        pre[20] = bar(5, None); pre[60] = bar(6, None)
        P = Stream(); P.wait(tok, cp)
        P(f"s_lshl_b32 s{sT0}, s{sT3}, 7\ns_add_u32 s{sT0}, s{sT0}, {F_KV}\ns_cmp_eq_u32 s{sW}, 3\ns_cselect_b32 s{sT0}, s{sT0}, {OOB}")
        P(f"v_mov_b32 {v(TMP)}, 1\nv_min_u32 {v(TMP+1)}, 1, v{vL}\nv_lshlrev_b32 {v(TMP+1)}, 30, {v(TMP+1)}")
        P(f"buffer_store_dword {v(TMP)}, {v(TMP+1)}, {WS}, s{sT0} offen sc1")
        post[30] = P
        KA, VAD = 4, 228
        ka = [5,6,7,8,9,10,11,12,250,251]
        va = [228+i for i in range(10)]
        F = Stream()
        T2 = 246
        F(f"s_lshl_b32 s{sT1}, s{sW}, 4\nv_add_u32 {v(T2)}, s{sT1}, v{vR}\nv_mul_u32_u24 {v(T2+1)}, 80, {v(T2)}\nv_mul_u32_u24 {v(T2)}, 48, {v(T2)}")
        F(f"v_add_u32 {v(T2+1)}, {VB}, {v(T2+1)}")
        for n in range(10):
            for isv in range(2):
                dst = va[n] if isv else ka[n]
                off = 8*(n//2) + (n & 1) - (4 if isv else 0)
                F(f"v_lshl_add_u32 {v(T2+2)}, v{vK}, 1, {off}")
                F(f"v_mul_i32_i24 {v(T2+3)}, 7282, {v(T2+2)}\nv_ashrrev_i32 {v(T2+3)}, 16, {v(T2+3)}")
                hs, es = (11520, 8) if isv else (6912, 4)
                F(f"v_mul_i32_i24 {v(T2+3)}, {hs - 9*es}, {v(T2+3)}")
                F(f"v_lshl_add_u32 {v(T2+3)}, {v(T2+2)}, {3 if isv else 2}, {v(T2+3)}")
                F(f"v_add_u32 {v(dst)}, {v(T2+3)}, {v(T2+isv)}")
        F(f"v_lshlrev_b32 {v(T2+2)}, 3, v{vL}\nv_add_u32 {v(T2+2)}, {DUM}, {v(T2+2)}\nv_subrev_u32 {v(T2+3)}, {QB}, {v(T2+2)}\nv_cmp_gt_u32 vcc, 2, v{vK}")
        F(f"v_cndmask_b32 v252, {v(T2+3)}, {v(ka[8])}, vcc\nv_cndmask_b32 v253, {v(T2+3)}, {v(ka[9])}, vcc")
        F(f"v_cndmask_b32 {v(ka[8])}, {v(T2+2)}, {v(ka[8])}, vcc\nv_cndmask_b32 {v(ka[9])}, {v(T2+2)}, {v(ka[9])}, vcc")
        F(f"v_cndmask_b32 {v(va[0])}, {v(va[0])}, {v(T2+2)}, vcc\nv_cndmask_b32 {v(va[1])}, {v(va[1])}, {v(T2+2)}, vcc")
        self.spread(post, 32, 88, F)
        self.narrow(S, evs, pre, post)
        self.ts(S, "qgemm", 3)
        wt = self.warm(S, 246, W3S, 663552) if self.o.warm else []
        S("s_barrier")
        for z in range(2):
            for n in range(10):
                S(f"ds_write_b32 {v(ka[n])}, {v(KP+10*z+n)} offset:{KB + (16+64*z)*48}")
            for n in range(10):
                t, e = 4 + n//2, n & 1
                src = V4+4*z+2*e if t == 4 else akv(t,z)+2*e
                S(f"ds_write_b64 {v(va[n])}, {r(src,2)} offset:{(16+64*z)*80}")
        for n in range(8): S(f"v_add_u32 {v(KP+n)}, {QB}, {v(ka[n])}")
        S(f"v_add_u32 {v(KP+8)}, {QB}, v252\nv_add_u32 {v(KP+9)}, {QB}, v253")
        for z in range(2):
            for n in range(10):
                t, e = n//2, n & 1
                S(f"v_cvt_pk_bf16_f32 {v(KP+10+n)}, {v(akv(t,z)+2*e)}, {v(akv(t,z)+2*e+1)}")
            for n in range(10):
                S(f"ds_write_b32 {v(KP+n)}, {v(KP+10+n)} offset:{64*z*48}")
        S.wait(wt)
        Lh, Lz = self.lab("h"), self.lab("z")
        S(f"s_cmp_lg_u32 s{sW}, 0\ns_cbranch_scc1 {Lh}")
        S(f"s_mov_b32 s{sT1}, {OOB}\ns_cmp_eq_u32 s{sSUP}, 0\ns_cbranch_scc1 {Lz}")
        S(f"s_sub_u32 s{sT1}, s{sT3}, 8\ns_lshl_b32 s{sT0}, s{sT1}, 7\ns_add_u32 s{sT0}, s{sT0}, {F_KV}")
        S(f"v_min_u32 {v(TMP+1)}, 1, v{vL}\nv_lshlrev_b32 {v(TMP+1)}, 30, {v(TMP+1)}")
        self.poll(S, TMP+1, TMP, f"s{sT0}", 1)
        S(f"s_mul_i32 s{sT1}, s{sT1}, 9216\ns_add_u32 s{sT1}, s{sT1}, {KV_BUF}")
        S(f"{Lz}:")
        for t in range(9):
            if t % 4 == 0 and t: S(f"s_add_u32 s{sT1}, s{sT1}, 4096")
            dst = AK + 4*t if t < 5 else AH + 4*(t-5)
            S(f"buffer_load_dwordx4 {r(dst,4)}, {v(vDA)}, {WS}, s{sT1} offen offset:{(t%4)*1024} sc1")
        S("s_waitcnt vmcnt(0)")
        for n in range(10):
            S(f"v_cvt_pk_bf16_f32 {v(KP+10+n)}, {v(AK+2*n)}, {v(AK+2*n+1)}")
        for n in range(10):
            S(f"ds_write_b32 {v(ka[n])}, {v(KP+10+n)} offset:{KB}")
        for n in range(10):
            src = AK+16+2*n if n < 2 else AH+2*(n-2)
            S(f"ds_write_b64 {v(va[n])}, {r(src,2)}")
        S(f"{Lh}:")
        S("s_waitcnt lgkmcnt(0)\ns_barrier")
        self.ts(S, "qkvlds", 4)
        Q, KR, LG, VR, OC, OP = 160, 172, 196, 204, 160, 180
        AKr, AVr, AQr, AO, RG = 4, 5, 6, 7, 8
        S(f"s_mul_i32 s{sT0}, s{sW}, 6912\nv_mul_u32_u24 {v(AKr)}, 48, v{vL}\nv_add_u32 {v(AKr)}, s{sT0}, {v(AKr)}\nv_add_u32 {v(AQr)}, {QB}, {v(AKr)}")
        S(f"s_mul_i32 s{sT0}, s{sW}, 11520\ns_add_u32 s{sT0}, s{sT0}, {VB}\nv_mul_u32_u24 {v(AVr)}, 80, v{vL}\nv_add_u32 {v(AVr)}, s{sT0}, {v(AVr)}")
        S(f"s_lshl_b32 s{sT0}, s{sW}, 8\nv_lshl_add_u32 {v(AO)}, v{vR}, 4, s{sT0}\nv_lshl_add_u32 {v(AO)}, v{vK}, 10, {v(AO)}")
        S(f"s_lshl_b32 s{sT0}, s{sSUP}, 7\nv_add_u32 {v(RG)}, s{sT0}, v{vL}\nv_mov_b32 {v(RG+1)}, {fbits(-1e9*18**0.5)}")
        cs = 18**-0.5*math.log2(math.e)
        S(f"s_mov_b32 s{sT2}, {fbits(cs)}")
        otok = None
        for z in range(2):
            def rd9(dst, ad, off):
                S(f"ds_read_b128 {v(dst,4)}, {v(ad)} offset:{off}")
                S(f"ds_read_b128 {v(dst+4,4)}, {v(ad)} offset:{off+16}")
                return S(f"ds_read_b32 {v(dst+8)}, {v(ad)} offset:{off+32}")
            def rdk(w): return rd9(KR + 12*(w & 1), AKr, KB + (16+64*z-2*w)*48)
            def rdv(w):
                dst, off = VR + 20*(w & 1), (16+64*z-2*w)*80
                for i in range(4): S(f"ds_read_b128 {v(dst+4*i,4)}, {v(AVr)} offset:{off+16*i}")
                return S(f"ds_read_b64 {v(dst+16,2)}, {v(AVr)} offset:{off+64}")
            rd9(Q, AQr, 64*z*48)
            kt = {0: rdk(0), 1: rdk(1)}
            vt = {}
            for w in range(8):
                S.wait(kt[w])
                kr = KR + 12*(w & 1)
                S(f"v_dot2_f32_bf16 {v(LG+w)}, {v(Q)}, {v(kr)}, 0")
                for d in range(1, 9): S(f"v_dot2_f32_bf16 {v(LG+w)}, {v(Q+d)}, {v(kr+d)}, {v(LG+w)}")
                if w + 2 < 8: kt[w+2] = rdk(w+2)
                else: vt[w-6] = rdv(w-6)
            if z == 0:
                for w in range(1, 8):
                    S(f"v_cmp_le_u32 vcc, {2*w}, {v(RG)}\nv_cndmask_b32 {v(LG+w)}, {v(RG+1)}, {v(LG+w)}, vcc")
            MX, SM = 244, 245
            S(f"v_max3_f32 {v(MX)}, {v(LG)}, {v(LG+1)}, {v(LG+2)}\nv_max3_f32 {v(SM)}, {v(LG+3)}, {v(LG+4)}, {v(LG+5)}")
            S(f"v_max3_f32 {v(MX)}, {v(MX)}, {v(LG+6)}, {v(LG+7)}\nv_max_f32 {v(MX)}, {v(MX)}, {v(SM)}")
            for w in range(8): S(f"v_sub_f32 {v(LG+w)}, {v(LG+w)}, {v(MX)}")
            for w in range(8): S(f"v_mul_f32 {v(LG+w)}, s{sT2}, {v(LG+w)}")
            for w in range(8): S(f"v_exp_f32 {v(LG+w)}, {v(LG+w)}")
            S(f"v_pk_add_f32 {v(MX,2)}, {v(LG,2)}, {v(LG+2,2)}\nv_pk_add_f32 {v(MX+2,2)}, {v(LG+4,2)}, {v(LG+6,2)}")
            S(f"v_pk_add_f32 {v(MX,2)}, {v(MX,2)}, {v(MX+2,2)}\nv_add_f32 {v(MX)}, {v(MX)}, {v(MX+1)}\nv_rcp_f32 {v(MX)}, {v(MX)}")
            for w in range(0, 8, 2): S(f"v_pk_mul_f32 {v(LG+w,2)}, {v(LG+w,2)}, {v(MX,2)} op_sel_hi:[1,0]")
            for w in range(8):
                S.wait(vt[w])
                vr = VR + 20*(w & 1); b = w & 1
                for d in range(9):
                    if w == 0:
                        S(f"v_pk_mul_f32 {v(OC+2*d,2)}, {v(vr+2*d,2)}, {v(LG,2)} op_sel_hi:[1,0]")
                    else:
                        S(f"v_pk_fma_f32 {v(OC+2*d,2)}, {v(vr+2*d,2)}, {v(LG+(w&6),2)}, {v(OC+2*d,2)} op_sel:[0,{b},0] op_sel_hi:[1,{b},1]")
                if w + 2 < 8: vt[w+2] = rdv(w+2)
            for d in range(9): S(f"v_cvt_pk_bf16_f32 {v(OP+d)}, {v(OC+2*d)}, {v(OC+2*d+1)}")
            for d in range(9, 12): S(f"v_mov_b32 {v(OP+d)}, 0")
            S(f"s_lshl_b32 s{sT0}, s{sSUP}, 4\ns_add_u32 s{sT0}, s{sT0}, s{sJ}\ns_mul_i32 s{sT0}, s{sT0}, 12288\ns_add_u32 s{sT0}, s{sT0}, {O_BUF + z*8*12288}")
            for st in range(3):
                otok = S(f"buffer_store_dwordx4 {v(OP+4*st,4)}, {v(AO)}, {WS}, s{sT0} offen sc1")
                if st < 2: S(f"s_add_u32 s{sT0}, s{sT0}, 4096")
            S("s_nop 1")
        self.ts(S, "attn", 5)
        L1, L2 = self.lab("u"), self.lab("u")
        S(f"s_bitcmp1_b32 s{sC}, 0\ns_cbranch_scc1 {L1}")
        self.unpack_xn(S, XN0)
        S(f"s_branch {L2}\n{L1}:")
        self.unpack_xn(S, XN1)
        S(f"{L2}:")
        S.wait(otok)
        S(f"s_lshl_b32 s{sT0}, s{sT3}, 5\ns_add_u32 s{sT0}, s{sT0}, s{sW}\ns_lshl_b32 s{sT0}, s{sT0}, 2\ns_add_u32 s{sT0}, s{sT0}, {F_O}")
        S(f"v_mov_b32 v240, 1\nv_min_u32 v241, 1, v{vL}\nv_lshlrev_b32 v241, 30, v241")
        S(f"buffer_store_dword v240, v241, {WS}, s{sT0} offen sc1")

    def slot(self, k):
        return 112 + 16*k if k < 9 else AG + 64 + 16*(k-9)

    def common(self, S):
        o = self.o
        U, HS = 88, 16
        VL16, VLH, VLO = 4, 5, 6
        VL16b, VLHb = 7, 8
        S(f"v_lshlrev_b32 v{VL16}, 4, v{vL}")
        RD = o.ring
        NW = 162 + 9*21
        wt = [None]*NW
        def wload(M, n):
            if n >= NW: return
            if n < 162:
                q = n
                if n == 0:
                    M(f"s_mul_i32 s{sWS}, s{sJ}, 663552\ns_mul_i32 s{sT0}, s{sW}, 165888\ns_add_u32 s{sWS}, s{sWS}, s{sT0}\ns_add_u32 s{sWS}, s{sWS}, {W3S}")
            else:
                p, q = divmod(n - 162, 21)
                if q == 0:
                    if p == 0:
                        M(f"s_mul_i32 s{sPB}, s{sJ}, 774144\ns_mul_i32 s{sT0}, s{sW}, 21504\ns_add_u32 s{sPB}, s{sPB}, s{sT0}\ns_add_u32 s{sPB}, s{sPB}, {W4S}")
                        M(f"s_add_u32 s{sWS}, s{sPB}, {8*86016}")
                    else:
                        M(f"s_add_u32 s{sWS}, s{sJ}, {p}\ns_and_b32 s{sWS}, s{sWS}, 7\ns_mul_i32 s{sWS}, s{sWS}, 86016\ns_add_u32 s{sWS}, s{sWS}, s{sPB}")
            if q % 4 == 0 and q: M(f"s_add_u32 s{sWS}, s{sWS}, 4096")
            wt[n] = M(f"buffer_load_dwordx4 {a(4*(n % 16),4)}, v{VL16}, {WS}, s{sWS} offen offset:{(q%4)*1024}")
        S(f"s_lshl_b32 s{sT0}, s{sT}, 7\ns_add_u32 s{sT0}, s{sT0}, {F_HS}")
        S(f"v_lshlrev_b32 v9, 2, v{vL}\nv_mov_b32 v10, {OOB}\nv_cmp_gt_u32 vcc, 4, v{vL}\nv_cndmask_b32 v9, v10, v9, vcc")
        S(f"s_lshl_b32 s{sT1}, s{sW}, 8\ns_add_u32 s{sT1}, s{sT1}, s{sCB}\nv_lshl_add_u32 v11, v{vR}, 4, s{sT1}\nv_lshl_add_u32 v11, v{vK}, 10, v11")
        self.ts(S, "roleend", 6)
        self.poll(S, 9, 10, f"s{sT0}", 0xf)
        self.ts(S, "hspoll", 7)
        ht = []
        for i in range(18):
            S(f"s_mov_b32 s{sT0}, {HS_BUF + 4096*i}")
            ht.append(S(f"buffer_load_dwordx4 {v(HS+4*i,4)}, v11, {WS}, s{sT0} offen sc1"))
        for n in range(RD): wload(S, n)
        SU, SQ, ST, TMP = 232, 236, 240, 244
        for i in range(8): S(f"v_mov_b32 {v(SU+i)}, 0")
        S("s_barrier")
        for i in range(18):
            S.wait(ht[i])
            for d in range(4):
                n = 4*i + d
                S(f"v_dot2c_f32_bf16 {v(U+2*n)}, s{sLO}, {v(HS+n)}")
                S(f"v_dot2c_f32_bf16 {v(U+2*n+1)}, s{sHI}, {v(HS+n)}")
            for d in range(4):
                n = 4*i + d; z = 2*(d & 1)
                S(f"v_pk_add_f32 {v(SU+z,2)}, {v(SU+z,2)}, {v(U+2*n,2)}")
                S(f"v_pk_fma_f32 {v(SQ+z,2)}, {v(U+2*n,2)}, {v(U+2*n,2)}, {v(SQ+z,2)}")
        S(f"v_pk_add_f32 {v(SU,2)}, {v(SU,2)}, {v(SU+2,2)}\nv_pk_add_f32 {v(SQ,2)}, {v(SQ,2)}, {v(SQ+2,2)}")
        S(f"v_add_f32 {v(SU)}, {v(SU)}, {v(SU+1)}\nv_add_f32 {v(SQ)}, {v(SQ)}, {v(SQ+1)}")
        self.stats_finish(S, SU, SQ, ST, TMP)
        S(f"s_lshl_b32 s{sT0}, s{sW}, 10\nv_add_u32 v9, s{sT0}, v{VL16}\nv_add_u32 v10, 0x10000, v9")
        for i in range(18):
            p = HS + 4*i
            for d in range(4):
                n = 4*i + d
                S(f"v_pk_fma_f32 {v(U+2*n,2)}, {v(U+2*n,2)}, {v(ST,2)}, {v(ST,2)} op_sel:[0,0,1] op_sel_hi:[1,0,1]")
            for d in range(4):
                n = 4*i + d
                S(f"v_cvt_pk_bf16_f32 {v(p+d)}, {v(U+2*n)}, {v(U+2*n+1)}")
            S(f"ds_write_b128 {v(9 if i < 16 else 10)}, {v(p,4)} offset:{(i % 16)*4096}")
        S(f"v_add_u32 v{VLH}, {LDS_H}, v{VL16}\nv_add_u32 v{VLO}, {LDS_O}, v{VL16}\nv_add_u32 v{VL16b}, 0x10000, v{VL16}\nv_add_u32 v{VLHb}, 0x10000, v{VLH}")
        S("s_waitcnt lgkmcnt(0)\ns_barrier")
        self.ts(S, "x1n", 8)
        ACC = [16, 32]
        GT, C0V, HP = 48, 56, 58
        VHW, VHW8 = 9, 10
        SUM = 64
        PB = 80
        PK = 96
        VF0, VONE, VPA, VPD = 11, 12, 13, 14
        R8 = 104
        VO, VO8 = 62, 63
        act = {}
        def rd_act(M, k, base, baseb, blk):
            sl = self.slot(k)
            t = None
            for rt in range(4):
                off = (blk*4 + rt)*1024
                t = M(f"ds_read_b128 {r(sl+4*rt,4)}, v{base if off < 65536 else baseb} offset:{off % 65536}")
            act[k] = t
        def gelu_tile(t):
            F = Stream()
            acc = ACC[t % 2]
            for rt in range(4):
                x = [acc+4*rt+i for i in range(4)]
                g = [GT + 4*(rt & 1) + i for i in range(4)]
                for i in range(4): F(f"v_mul_f32 {v(g[i])}, {v(x[i])}, {v(x[i])}")
                for i in range(4): F(f"v_fma_f32 {v(g[i])}, {v(g[i])}, s{sC1}, {v(C0V)}")
                for i in range(4): F(f"v_mul_f32 {v(g[i])}, {v(g[i])}, {v(x[i])}")
                for i in range(4): F(f"v_exp_f32 {v(g[i])}, {v(g[i])}")
                for i in range(4): F(f"v_add_f32 {v(g[i])}, 1.0, {v(g[i])}")
                for i in range(4): F(f"v_rcp_f32 {v(g[i])}, {v(g[i])}")
                for i in range(4): F(f"v_mul_f32 {v(g[i])}, {v(g[i])}, {v(x[i])}")
                p = HP + 2*(rt & 1)
                F(f"v_cvt_pk_bf16_f32 {v(p)}, {v(g[0])}, {v(g[1])}")
                F(f"v_cvt_pk_bf16_f32 {v(p+1)}, {v(g[2])}, {v(g[3])}")
                if t < 8: hw[t] = F(f"ds_write_b64 v{VHW}, {v(p,2)} offset:{((t>>1)*4+rt)*1024 + (t&1)*8}")
                else: hw[t] = F(f"ds_write_b64 v{VHW8}, {v(p,2)} offset:{rt*1024}")
            return F
        hw = {}
        def kstep(M, n, acc, k, first, after=None):
            sl = self.slot(k)
            M.wait(wt[n], act.get(k))
            for rt in range(4):
                M(f"v_mfma_f32_16x16x32_bf16 {v(acc+4*rt,4)}, {a(4*(n % 16),4)}, {r(sl+4*rt,4)}, {'0' if first else v(acc+4*rt,4)}")
                if rt == 0: wload(M, n + RD)
                if rt == 1 and after: after(M)
        setup = Stream()
        setup(f"v_mov_b32 {v(C0V)}, s{sC0}\ns_lshl_b32 s{sT0}, s{sW}, 14\nv_add_u32 v{VHW}, s{sT0}, v{VLH}")
        setup(f"s_lshr_b32 s{sT0}, s{sW}, 1\ns_lshl_b32 s{sT0}, s{sT0}, 12\ns_and_b32 s{sT1}, s{sW}, 1\ns_lshl_b32 s{sT1}, s{sT1}, 3\ns_add_u32 s{sT0}, s{sT0}, s{sT1}\nv_add_u32 v{VHW8}, s{sT0}, v{VLHb}")
        setup(f"v_mov_b32 v{VONE}, 1\nv_min_u32 v{VF0}, 1, v{vL}\nv_lshlrev_b32 v{VF0}, 30, v{VF0}")
        setup(f"v_lshlrev_b32 v{VPA}, 2, v{vL}\nv_mov_b32 v{VPD}, {OOB}\nv_cmp_gt_u32 vcc, 4, v{vL}\nv_cndmask_b32 v{VPA}, v{VPD}, v{VPA}, vcc")
        inv_pos = {pos_of_beta(b): b for b in range(18)}
        for k in range(3): rd_act(S, k, VL16, VL16b, k)
        ot = {}
        for t in range(9):
            M = Stream()
            if t == 8:
                M.wait(hw[6], ot["dma"]); M("s_barrier")
                for st in range(3): rd_act(M, 18+st, VLO, VLO, st)
            for i in range(18):
                def after(MM, i=i, t=t):
                    if t == 0 and i + 3 < 18: rd_act(MM, i+3, VL16, VL16b, i+3)
                    if t == 8 and 1 <= i <= 12: rd_act(MM, i-1, VLH, VLHb, inv_pos[i-1])
                    if t == 2 and i == 0 and o.warm: ot["warm"] = self.warm(MM, PB, W4S, 774144)
                    if t == 4 and i == 0:
                        MM(f"s_lshl_b32 s{sT3}, s{sSUP}, 3\ns_add_u32 s{sT3}, s{sT3}, s{sJ}\ns_lshl_b32 s{sT3}, s{sT3}, 7\ns_add_u32 s{sT3}, s{sT3}, {F_O}")
                        ot["poll"] = MM(f"buffer_load_dword v{VPD}, v{VPA}, {WS}, s{sT3} offen sc1")
                    if t == 5 and i == 0:
                        self.poll(MM, VPA, VPD, f"s{sT3}", 0xf, first_issued=ot["poll"])
                        MM(f"s_lshl_b32 s{sT0}, s{sC}, 3\ns_add_u32 s{sT0}, s{sT0}, s{sJ}\ns_mul_i32 s{sT0}, s{sT0}, 12288\ns_mul_i32 s{sT1}, s{sW}, 3072")
                        MM(f"s_add_u32 s{sT0}, s{sT0}, s{sT1}\ns_add_u32 s{sT0}, s{sT0}, {O_BUF}\ns_add_u32 m0, s{sT1}, {LDS_O}")
                        for st in range(3):
                            ot["dma"] = MM(f"buffer_load_dwordx4 v{VL16}, {WS}, s{sT0} offen offset:{st*1024} sc1 lds")
                kk = i
                saved = act.get(kk)
                kstep(M, 18*t+i, ACC[t % 2], kk, i == 0, after)
            if t == 0: M = interleave(M, setup, 8, 60)
            else: M = interleave(M, gelu_tile(t-1), 5, 70)
            S.extend(M)
        self.ts(S, "gemm1", 9)
        def pslot(p): return p if p < 12 else (18 + p - 12 if p < 15 else p - 3)
        sPO, sPF = sSO, sLB
        st_tok = {}
        def send(p):
            F = Stream()
            acc = ACC[(9 + p) % 2]
            if p == 0: F(f"s_mov_b32 s{sT0}, 8")
            else: F(f"s_add_u32 s{sT0}, s{sJ}, {p}\ns_and_b32 s{sT0}, s{sT0}, 7")
            F(f"s_mul_i32 s{sT1}, s{sC}, 9\ns_add_u32 s{sT0}, s{sT0}, s{sT1}")
            F(f"s_lshl_b32 s{sPF}, s{sT0}, 2\ns_add_u32 s{sPF}, s{sPF}, s{sW}\ns_lshl_b32 s{sPF}, s{sPF}, 3\ns_add_u32 s{sPF}, s{sPF}, s{sJ}\ns_lshl_b32 s{sPF}, s{sPF}, 2\ns_add_u32 s{sPF}, s{sPF}, {F_P}")
            F(f"s_lshl_b32 s{sPO}, s{sT0}, 3\ns_add_u32 s{sPO}, s{sPO}, s{sJ}\ns_lshl_b32 s{sPO}, s{sPO}, 2\ns_add_u32 s{sPO}, s{sPO}, s{sW}\ns_lshl_b32 s{sPO}, s{sPO}, 11\ns_add_u32 s{sPO}, s{sPO}, {P_BUF}")
            for h in range(2):
                for i in range(4): F(f"v_cvt_pk_bf16_f32 {v(PK+4*h+i)}, {v(acc+8*h+2*i)}, {v(acc+8*h+2*i+1)}")
                st_tok[p] = F(f"buffer_store_dwordx4 {v(PK+4*h,4)}, v{VL16}, {WS}, s{sPO} offen offset:{h*1024} sc1")
            return F
        def flag(M, p):
            M.wait(st_tok[p])
            M(f"buffer_store_dword v{VONE}, v{VF0}, {WS}, s{sPF} offen sc1")
        sPI, sPQ = sM, sSUP
        def mask_of(mem):
            m = 0
            for x in mem: m |= (0xff00 if x == 8 else 1 << x)
            return m
        ld = {}
        def fetch(M, mem):
            b = PB
            for x in mem:
                if x == 8:
                    M(f"s_mul_i32 s{sT0}, s{sC}, 9\ns_add_u32 s{sT0}, s{sT0}, 8\ns_lshl_b32 s{sT0}, s{sT0}, 6\ns_add_u32 s{sT0}, s{sT0}, s{sJ}\ns_lshl_b32 s{sT0}, s{sT0}, 10\ns_add_u32 s{sT0}, s{sT0}, {P_BUF}")
                    M(f"s_lshl_b32 s{sT1}, s{sW}, 8\nv_lshl_add_u32 v15, v{vR}, 4, s{sT1}\nv_lshl_add_u32 v15, v{vK}, 13, v15")
                    t0 = M(f"buffer_load_dwordx4 {v(b,4)}, v15, {WS}, s{sT0} offen sc1")
                    M(f"s_add_u32 s{sT0}, s{sT0}, 32768")
                    t1 = M(f"buffer_load_dwordx4 {v(b+4,4)}, v15, {WS}, s{sT0} offen sc1")
                else:
                    M(f"s_sub_u32 s{sT0}, s{sJ}, {x}\ns_and_b32 s{sT0}, s{sT0}, 7\ns_lshl_b32 s{sT0}, s{sT0}, 13\ns_add_u32 s{sT0}, s{sT0}, s{sPI}")
                    t0 = M(f"buffer_load_dwordx4 {v(b,4)}, v{VL16}, {WS}, s{sT0} offen sc1")
                    t1 = M(f"buffer_load_dwordx4 {v(b+4,4)}, v{VL16}, {WS}, s{sT0} offen offset:1024 sc1")
                ld[x] = (b, t0, t1)
                b += 8
        def accum(mem):
            F = Stream()
            for x in mem:
                b, t0, t1 = ld[x]
                if x == 8:
                    g = GT
                    F.wait(t0)
                    for i in range(4):
                        F(f"v_lshlrev_b32 {v(g+2*i)}, 16, {v(b+i)}\nv_and_b32 {v(g+2*i+1)}, s{sMSK}, {v(b+i)}")
                    F.wait(t1)
                    for i in range(4):
                        F(f"v_dot2c_f32_bf16 {v(g+2*i)}, s{sLO}, {v(b+4+i)}\nv_dot2c_f32_bf16 {v(g+2*i+1)}, s{sHI}, {v(b+4+i)}")
                    for i in range(4): F(f"v_permlane32_swap_b32 {v(g+i)}, {v(g+4+i)}")
                    for i in range(4): F(f"v_add_f32 {v(g+i)}, {v(g+i)}, {v(g+4+i)}")
                    for i in range(2): F(f"v_permlane16_swap_b32 {v(g+i)}, {v(g+2+i)}")
                    for i in range(2): F(f"v_add_f32 {v(g+i)}, {v(g+i)}, {v(g+2+i)}")
                    for i in range(2): F(f"v_add_f32 {v(g+i)}, {v(g+i)}, {v(R8+i)}")
                    F(f"v_cvt_pk_bf16_f32 {v(g)}, {v(g)}, {v(g+1)}")
                    F(f"buffer_store_dword {v(g)}, v{VO8}, {OUT}, s{sCB} offen")
                else:
                    for h, t in enumerate((t0, t1)):
                        F.wait(t)
                        for i in range(4):
                            F(f"v_dot2c_f32_bf16 {v(SUM+8*h+2*i)}, s{sLO}, {v(b+4*h+i)}\nv_dot2c_f32_bf16 {v(SUM+8*h+2*i+1)}, s{sHI}, {v(b+4*h+i)}")
            return F
        res_ld, res = Stream(), Stream()
        F = res_ld
        F(f"s_mul_i32 s{sPI}, s{sC}, 9\ns_lshl_b32 s{sPQ}, s{sPI}, 7\ns_add_u32 s{sPQ}, s{sPQ}, {F_P}")
        F(f"s_add_u32 s{sPI}, s{sPI}, s{sJ}\ns_lshl_b32 s{sPI}, s{sPI}, 5\ns_add_u32 s{sPI}, s{sPI}, s{sW}\ns_lshl_b32 s{sPI}, s{sPI}, 11\ns_add_u32 s{sPI}, s{sPI}, {P_BUF}")
        F(f"v_sub_u32 v15, s{sJ}, v{vL}\nv_and_b32 v15, 7, v15\ns_lshl_b32 s{sT2}, s{sJ}, 2\ns_add_u32 s{sT2}, s{sT2}, s{sW}\ns_lshl_b32 s{sT2}, s{sT2}, 5")
        F(f"s_lshr_b32 s{sT3}, s{sJ}, 1\ns_lshl_b32 s{sT3}, s{sT3}, 5\ns_add_u32 s{sT3}, s{sT3}, 1024")
        F(f"v_mov_b32 v{VPA}, s{sT2}\nv_mov_b32 v{VPD}, s{sT3}\nv_cmp_gt_u32 vcc, 8, v{vL}\nv_cndmask_b32 v{VPA}, v{VPD}, v{VPA}, vcc")
        F(f"v_lshl_add_u32 v{VPA}, v15, 2, v{VPA}\nv_mov_b32 v{VPD}, {OOB}\nv_cmp_gt_u32 vcc, 16, v{vL}\nv_cndmask_b32 v{VPA}, v{VPD}, v{VPA}, vcc")
        F(f"s_lshl_b32 s{sT2}, s{sJ}, 2\ns_add_u32 s{sT2}, s{sT2}, s{sW}\ns_lshl_b32 s{sT3}, s{sT2}, 11\ns_lshl_b32 s{sT2}, s{sT2}, 5")
        F(f"v_mul_u32_u24 v{GT}, 1152, v{vR}\nv_add_u32 v{GT}, s{sT2}, v{GT}\nv_lshl_add_u32 v{GT+1}, v{vK}, 3, v{GT}")
        F(f"v_and_b32 v{GT+2}, 1, v{vK}\nv_lshrrev_b32 v{GT+3}, 1, v{vK}")
        F(f"v_mul_u32_u24 v{VO}, 18432, v{GT+2}\nv_lshl_add_u32 v{VO}, v{GT+3}, 4, v{VO}\nv_add_u32 v{VO}, v{VO}, v{GT}")
        F(f"v_lshl_add_u32 v{GT+4}, v{vR}, 4, s{sT3}\nv_lshl_add_u32 v{GT+4}, v{GT+3}, 10, v{GT+4}\nv_lshl_add_u32 v{GT+4}, v{GT+2}, 3, v{GT+4}")
        F(f"s_add_u32 s{sT3}, s{sCB}, {HS_BUF}\ns_mov_b32 s{sT2}, s{sCB}")
        rx, rh = [], []
        for rt in range(4):
            rx.append(F(f"buffer_load_dwordx2 {v(PB+2*rt,2)}, v{GT+1}, {X_SRD}, s{sT2} offen"))
            if rt < 3: F(f"s_add_u32 s{sT2}, s{sT2}, 18432")
            rh.append(F(f"buffer_load_dwordx2 {v(PB+8+2*rt,2)}, v{GT+4}, {WS}, s{sT3} offen offset:{rt*256} sc1"))
        F(f"s_and_b32 s{sT2}, s{sJ}, 1\ns_lshl_b32 s{sT2}, s{sT2}, 5\nv_lshl_add_u32 v{GT+5}, v{GT+3}, 4, v{vR}\nv_add_u32 v{GT+5}, s{sT2}, v{GT+5}")
        F(f"s_lshr_b32 s{sT2}, s{sJ}, 1\ns_lshl_b32 s{sT2}, s{sT2}, 2\ns_add_u32 s{sT2}, s{sT2}, s{sW}\ns_lshl_b32 s{sCNT}, s{sT2}, 3\ns_add_u32 s{sCNT}, s{sCNT}, 1024")
        F(f"v_mul_u32_u24 v{VO8}, 1152, v{GT+5}\nv_lshl_add_u32 v{VO8}, v{GT+2}, 2, v{VO8}\nv_add_u32 v{VO8}, s{sCNT}, v{VO8}")
        F(f"s_lshr_b32 s{sCNT}, s{sT2}, 1\ns_lshl_b32 s{sCNT}, s{sCNT}, 10\ns_and_b32 s{sT2}, s{sT2}, 1\ns_lshl_b32 s{sT2}, s{sT2}, 3\ns_add_u32 s{sT2}, s{sT2}, s{sCNT}\ns_add_u32 s{sT2}, s{sT2}, 65536")
        F(f"v_lshl_add_u32 v{GT+6}, v{GT+5}, 4, s{sT2}\nv_lshl_add_u32 v{GT+6}, v{GT+2}, 2, v{GT+6}")
        r8x = F(f"buffer_load_dword {v(R8+2)}, v{VO8}, {X_SRD}, s{sCB} offen")
        r8h = F(f"buffer_load_dword {v(R8+3)}, v{GT+6}, {WS}, s{sT3} offen sc1")
        F(f"v_lshlrev_b32 v{GT+5}, 3, v{GT+5}\nv_add_u32 v{GT+5}, {LDS_ST}, v{GT+5}\nv_lshlrev_b32 v15, 3, v{vR}\nv_add_u32 v15, {LDS_ST}, v15")
        r8s = F(f"ds_read_b64 {v(R8+4,2)}, v{GT+5}")
        F = res
        rs = [F(f"ds_read_b64 {v(GT+2*rt,2)}, v15 offset:{rt*128}") for rt in range(4)]
        F.wait(r8x, r8h, r8s)
        F(f"v_add_f32 {v(R8+4)}, 1.0, {v(R8+4)}\nv_lshlrev_b32 {v(R8)}, 16, {v(R8+2)}\nv_and_b32 {v(R8+1)}, s{sMSK}, {v(R8+2)}")
        F(f"v_fma_f32 {v(R8)}, {v(R8)}, {v(R8+4)}, {v(R8+5)}\nv_fma_f32 {v(R8+1)}, {v(R8+1)}, {v(R8+4)}, {v(R8+5)}")
        F(f"v_dot2c_f32_bf16 {v(R8)}, s{sLO}, {v(R8+3)}\nv_dot2c_f32_bf16 {v(R8+1)}, s{sHI}, {v(R8+3)}")
        F.wait(rs, rx, rh)
        for rt in range(4):
            F(f"v_add_f32 {v(GT+2*rt)}, 1.0, {v(GT+2*rt)}")
            for e in range(2):
                F(f"v_lshlrev_b32 {v(SUM+4*rt+2*e)}, 16, {v(PB+2*rt+e)}\nv_and_b32 {v(SUM+4*rt+2*e+1)}, s{sMSK}, {v(PB+2*rt+e)}")
            for e in range(4): F(f"v_fma_f32 {v(SUM+4*rt+e)}, {v(SUM+4*rt+e)}, {v(GT+2*rt)}, {v(GT+2*rt+1)}")
            for e in range(2):
                F(f"v_dot2c_f32_bf16 {v(SUM+4*rt+2*e)}, s{sLO}, {v(PB+8+2*rt+e)}\nv_dot2c_f32_bf16 {v(SUM+4*rt+2*e+1)}, s{sHI}, {v(PB+8+2*rt+e)}")
        batch_at = {p: mem for p, mem in o.batches}
        done = set(x for p, mem in o.batches for x in mem)
        tail = [x for x in range(1, 9) if x not in done]
        pt = {}
        FL = min(20, RD + 4)
        for p in range(9):
            M = Stream()
            snd = send(p-1) if p >= 1 else None
            for q in range(21):
                def after(MM, q=q, p=p):
                    if p == 0 and q == 11:
                        MM.wait(hw[8]); MM("s_barrier")
                    if p == 0 and 12 <= q <= 17: rd_act(MM, q, VLH, VLHb, inv_pos[q+3])
                    if p >= 1 and q == FL: flag(MM, p-1)
                    if p in batch_at and q == 0:
                        pt[p] = MM(f"buffer_load_dword v{VPD}, v{VPA}, {WS}, s{sPQ} offen sc1")
                    if p in batch_at and q == min(20, RD):
                        self.poll(MM, VPA, VPD, f"s{sPQ}", mask_of(batch_at[p]), first_issued=pt[p])
                        fetch(MM, batch_at[p])
                if p == 0 and q == 0: g8 = gelu_tile(8)
                kstep(M, 162 + 21*p + q, ACC[(9+p) % 2], pslot(q), q == 0, after)
            if p == 0: M = interleave(M, g8, 5, 44)
            if p >= 1: M = interleave(M, snd, 1, 14)
            if p == 1: M = interleave(M, res_ld, 16, 80)
            if p == 2: M = interleave(M, res, 56, 83)
            if p-1 in batch_at: M = interleave(M, accum(batch_at[p-1]), 44, 80)
            S.extend(M)
        self.ts(S, "gemm2", 10)
        acc = ACC[(9+8) % 2]
        if 8 in batch_at: S.extend(accum(batch_at[8]))
        for i in range(0, 16, 2): S(f"v_pk_add_f32 {v(SUM+i,2)}, {v(SUM+i,2)}, {v(acc+i,2)}")
        while tail:
            mem, tail = tail[:2], tail[2:]
            self.poll(S, VPA, VPD, f"s{sPQ}", mask_of(mem))
            fetch(S, mem)
            S.extend(accum(mem))
        self.ts(S, "tail", 11)
        for h in range(2):
            for i in range(4): S(f"v_cvt_pk_bf16_f32 {v(PK+4*h+i)}, {v(SUM+8*h+2*i)}, {v(SUM+8*h+2*i+1)}")
            S(f"s_add_u32 s{sT0}, s{sCB}, {h*36864}")
            S(f"v_permlane16_swap_b32 {v(PK+4*h)}, {v(PK+4*h+2)}\nv_permlane16_swap_b32 {v(PK+4*h+1)}, {v(PK+4*h+3)}")
            S(f"buffer_store_dwordx4 {v(PK+4*h,4)}, v{VO}, {OUT}, s{sT0} offen")
        if o.ts:
            S("s_waitcnt vmcnt(0)")
            self.ts(S, "end", 12)
            S("s_waitcnt lgkmcnt(0)")
            S(f"s_lshl_b32 s{sT0}, s{sID}, 2\ns_add_u32 s{sT0}, s{sT0}, s{sW}\ns_lshl_b32 s{sT0}, s{sT0}, 8\ns_add_u32 s{sT0}, s{sT0}, {TS_BUF}")
            for i in range(13):
                S(f"v_mov_b32 v16, s{sTS+2*i}\nbuffer_store_dword v16, v{VF0}, {WS}, s{sT0} offen offset:{4*i}")

    def main_kernel(self, name):
        P, A, B, C = Stream(), Stream(), Stream(), Stream()
        self.prologue(P, name)
        P(f"s_lshr_b32 s3, s{sJ}, 2\ns_and_b32 s{sT0}, s{sC}, 1\ns_cmp_eq_u32 s3, s{sT0}\ns_cbranch_scc1 Lmix")
        self.role_att(A)
        A("s_branch Lcommon")
        B(".p2align 5\nLmix:")
        self.role_mix(B)
        C(".p2align 5\nLcommon:")
        self.common(C)
        C("Lend:\ns_endpgm")
        txt = []
        P.extend(A)
        for part in (P, B, C):
            t, rep = finalize(part)
            txt.append(t.replace("s_waitcnt vmcnt(0) ; slow", "s_waitcnt vmcnt(0)"))
        return f".globl {name}\n.p2align 8\n.type {name},@function\n" + "\n".join(txt), kd(name)


def build(opt, path):
    g = Gen(opt)
    k0, kd0 = gen_shuffle_kernel("relayout_kernel")
    k1, kd1 = g.main_kernel(KNAME + "_kernel")
    ref = open("cdna_kernels/" + KNAME + ".s.ref").read().split("\n")
    hdr = [l for l in ref[:12]]
    hdr.append("; @launch kernel=relayout_kernel grid=(256,1,1) block=(256,1,1) lds=49152")
    hdr.append(f"; @launch kernel={KNAME}_kernel grid=(256,1,1) block=(256,1,1) lds=163840")
    for i in range(opt.nempty):
        hdr.append("; @launch kernel=empty_kernel grid=(256,1,1) block=(256,1,1) lds=0")
    for i in range(opt.nshuf):
        hdr.insert(12, hdr[12])
    if opt.nempty:
        k1 += "\n.globl empty_kernel\n.p2align 8\n.type empty_kernel,@function\nempty_kernel:\n    s_endpgm\n"
        kd1 += kd("empty_kernel", vgpr=8, accum=8)
    txt = "\n".join(hdr) + '\n.amdgcn_target "amdgcn-amd-amdhsa--gfx950"\n.text\n' + k0 + "\n" + k1 + '\n.section .rodata,"a"\n' + kd0 + kd1
    open(path, "w").write(txt)

if __name__ == "__main__":
    o = Opt()
    path = sys.argv[1]
    for kv in sys.argv[2:]:
        k, x = kv.split("=")
        setattr(o, k, eval(x))
    build(o, path)
```
